```python
import torch

def _softmax(x, axis=-1):
    return torch.softmax(x, dim=axis)
def _gelu(x):
    return torch.nn.functional.gelu(x, approximate="tanh")
def _silu(x):
    return torch.nn.functional.silu(x)
def _sigmoid(x):
    return torch.sigmoid(x)
def _layernorm(x, axis=-1, eps=1e-5):
    m = x.mean(dim=axis, keepdim=True)
    v = x.var(dim=axis, keepdim=True, unbiased=False)
    return (x - m) / torch.sqrt(v + eps)
def _scatter_add(tgt, idx, src, axis=0):
    return tgt.clone().index_add_(axis, idx, src)
def _segment_sum(src, seg, n):
    out = torch.zeros((n,) + src.shape[1:], dtype=src.dtype)
    return out.index_add_(0, seg, src)
def _pad(x, pw):
    flat = tuple(v for pair in reversed(pw) for v in pair)
    return torch.nn.functional.pad(x, flat)

kernel_name = 'interleave_layers__ssm_conv_s4d__dense_activation_relu__prompt'

def setup_inputs():

    _w = (lambda a: (lambda t: t.to(torch.bfloat16) if t.is_floating_point() else t)(torch.as_tensor(a)))
    def _A_setup():
        Bsz, L, D, N = 1, 2048, 512, 128
        return {
            "u": _w((lambda *s: torch.randn(*s, dtype=torch.bfloat16) * 0.05)(Bsz, L, D)),
            "log_A_real": _w((lambda *s: torch.randn(*s, dtype=torch.bfloat16) * 3.2)(D, N) * 0.5),
            "A_imag": _w((lambda *s: torch.randn(*s, dtype=torch.bfloat16) * 0.2)(D, N) * 3.14),
            "C_real": _w((lambda *s: torch.randn(*s, dtype=torch.bfloat16) * 0.2)(D, N) / N ** 0.5),
            "C_imag": _w((lambda *s: torch.randn(*s, dtype=torch.bfloat16) * 0.2)(D, N) / N ** 0.5),
            "log_dt": _w((lambda *s: torch.randn(*s, dtype=torch.bfloat16) * 0.2)(D) * 0.5 - 4.0),
            "D_skip": _w((lambda *s: torch.randn(*s, dtype=torch.bfloat16) * 0.2)(D)),
        }
    _A_in = _A_setup()

    def _B_setup():
        B, S, D, Dff = 1, 2048, 512, 1792
        return {
            "x": _w((lambda *s: torch.randn(*s, dtype=torch.bfloat16) * 0.05)(B, S, D)),
            "w1": _w((lambda *s: torch.randn(*s, dtype=torch.bfloat16) * 0.05)(D, Dff)),
            "w2": _w((lambda *s: torch.randn(*s, dtype=torch.bfloat16) * 0.05)(Dff, D)),
        }
    _B_in = _B_setup()

    return {
        "A_u": _A_in["u"],
        "A_log_A_real": _A_in["log_A_real"],
        "A_A_imag": _A_in["A_imag"],
        "A_C_real": _A_in["C_real"],
        "A_C_imag": _A_in["C_imag"],
        "A_log_dt": _A_in["log_dt"],
        "A_D_skip": _A_in["D_skip"],
        "B_x": _B_in["x"],
        "B_w1": _B_in["w1"],
        "B_w2": _B_in["w2"],
    }

def reference(A_u, A_log_A_real, A_A_imag, A_C_real, A_C_imag, A_log_dt, A_D_skip, B_x, B_w1, B_w2):
    def _A_ref(u, log_A_real, A_imag, C_real, C_imag, log_dt, D_skip):
        L = u.shape[1]
        dt = torch.exp(log_dt)
        A = -torch.exp(log_A_real) + 1j * A_imag
        C = (C_real + 1j * C_imag) * dt[:, None]
        pos = (lambda x, dt: x.to(dt))(torch.arange(L), log_dt.dtype)
        P = torch.exp((A * dt[:, None])[:, :, None] * pos[None, None, :])
        K = 2.0 * torch.einsum("dn,dnl->dl", C, P).real
        L2 = 2 * L
        u_t = (lambda x, *d: x.permute(*d))(u, 0, 2, 1)
        Kf = (lambda x, *a, **k: torch.fft.rfft(x.float(), *a, **k))(K, L2)
        Uf = (lambda x, *a, **k: torch.fft.rfft(x.float(), *a, **k))(u_t, L2)
        y = (lambda x, *a, **k: torch.fft.irfft(x, *a, **k).to(torch.bfloat16))(Uf * Kf[None, :, :], L2)[:, :, :L]
        y = (lambda x, *d: x.permute(*d))(y, 0, 2, 1)
        return y + u * D_skip[None, None, :]

    def _B_ref(x, w1, w2):
        h = torch.einsum("bsd,df->bsf", x, w1)
        zero = torch.zeros_like(h)
        h = torch.maximum(h, zero)
        return torch.einsum("bsf,fd->bsd", h, w2)

    x = A_u
    x = x + _A_ref(_layernorm(x, axis=-1), A_log_A_real, A_A_imag, A_C_real, A_C_imag, A_log_dt, A_D_skip)
    x = x + _B_ref(_layernorm(x, axis=-1), B_w1, B_w2)
    x = x + _A_ref(_layernorm(x, axis=-1), A_log_A_real, A_A_imag, A_C_real, A_C_imag, A_log_dt, A_D_skip)
    x = x + _B_ref(_layernorm(x, axis=-1), B_w1, B_w2)
    return x
```

```python
L = 2048; D = 512; NM = 128; DFF = 1792
MB = 1 << 20
WS_XT0 = 0
WS_XT1 = 2 * MB
WS_XT2 = 4 * MB
WS_XT3 = 6 * MB
WS_H   = 8 * MB
WS_KR  = 16 * MB
KR_STRIDE = 4224
WS_ST1 = 19 * MB
WS_ST3 = 19 * MB + 65536
WS_CS  = 19 * MB + 131072
WS_SIZE = 268435456

class Asm:
    def __init__(self):
        self.lines = []
    def __call__(self, s):
        for ln in s.strip("\n").split("\n"):
            ln = ln.strip()
            if ln:
                self.lines.append("    " + ln)
    def label(self, l):
        self.lines.append(l + ":")
    def raw(self, s):
        self.lines.append(s)
    def text(self):
        return "\n".join(self.lines) + "\n"

def srd(a, d, b, nbytes):
    a(f"s_mov_b32 s{d}, s{b}")
    a(f"s_mov_b32 s{d+1}, s{b+1}")
    a(f"s_mov_b32 s{d+2}, {nbytes}")
    a(f"s_mov_b32 s{d+3}, 0x00020000")

def kernel_begin(a, name):
    a.raw(".text")
    a.raw(f".globl {name}")
    a.raw(".p2align 8")
    a.raw(f".type {name},@function")
    a.label(name)

def kernel_desc(name, vgpr, sgpr=96):
    acc = (vgpr + 3) // 4 * 4
    return f""".section .rodata,"a"
.p2align 6
.amdhsa_kernel {name}
  .amdhsa_next_free_vgpr {vgpr}
  .amdhsa_next_free_sgpr {sgpr}
  .amdhsa_accum_offset {acc}
  .amdhsa_group_segment_fixed_size 0
  .amdhsa_kernarg_size 104
  .amdhsa_user_sgpr_count 2
  .amdhsa_user_sgpr_kernarg_segment_ptr 1
  .amdhsa_system_sgpr_workgroup_id_x 1
  .amdhsa_float_denorm_mode_32 3
.end_amdhsa_kernel
"""

def vr(b, n):
    return f"v[{b}:{b+n-1}]"
```

```python
from common import *
from prep import load_ptrs, unpack

KB = 0
KCS = 4160
UB = 16640
PBS = 9216
CONV_LDS = 36864

def bf16r_pair(a, pk, x0, x1, d0, d1):
    a(f"v_cvt_pk_bf16_f32 v{pk}, v{x0}, v{x1}")
    a(f"v_lshlrev_b32 v{d0}, 16, v{pk}")
    a(f"v_and_b32 v{d1}, 0xffff0000, v{pk}")

def gen_conv(a, name, xt_in, xt_out, st):
    kernel_begin(a, name)
    load_ptrs(a)
    a("s_cmp_ge_u32 s2, 512")
    a(f"s_cbranch_scc1 {name}_end")
    a("s_waitcnt lgkmcnt(0)")
    srd(a, 32, 28, WS_SIZE)
    a(f"""
    v_lshlrev_b32 v1, 4, v0            ; 16 t
    v_lshlrev_b32 v2, 5, v0            ; 32 t
    s_lshl_b32 s3, s2, 12
    s_add_u32 s36, s3, {xt_in}
    s_add_u32 s37, s3, {xt_out}
    s_mul_i32 s38, s2, {KR_STRIDE}
    s_add_u32 s38, s38, {WS_KR}
    s_mov_b32 s39, {st}
    s_mov_b32 s40, {st + 8192}
    s_mov_b32 s41, {st + 16384}
    buffer_load_dwordx4 v[4:7], v1, s[32:35], s36 offen          ; x
    buffer_load_dwordx4 v[8:11], v1, s[32:35], s38 offen         ; K chunk
    buffer_load_dwordx2 v[12:13], v1, s[32:35], s38 offen offset:16
    buffer_load_dwordx4 v[16:19], v2, s[32:35], s39 offen        ; piv
    buffer_load_dwordx4 v[20:23], v2, s[32:35], s39 offen offset:16
    buffer_load_dwordx4 v[24:27], v2, s[32:35], s40 offen        ; s1
    buffer_load_dwordx4 v[28:31], v2, s[32:35], s40 offen offset:16
    buffer_load_dwordx4 v[32:35], v2, s[32:35], s41 offen        ; s2
    buffer_load_dwordx4 v[36:39], v2, s[32:35], s41 offen offset:16
    s_lshr_b32 s3, s2, 1
    s_lshl_b32 s3, s3, 2
    s_add_u32 s16, s16, s3
    s_addc_u32 s17, s17, 0
    s_load_dword s42, s[16:17], 0
    """)
    a(f"""
    v_mov_b32 v40, 0
    v_mov_b32 v41, 0
    v_mov_b32 v42, 0
    v_mov_b32 v43, 0
    v_cmp_gt_u32 vcc, 160, v0
    s_and_saveexec_b64 s[44:45], vcc
    ds_write_b128 v1, v[40:43] offset:{UB}
    s_mov_b64 exec, s[44:45]
    v_cmp_gt_u32 vcc, 4, v0
    s_and_saveexec_b64 s[44:45], vcc
    """)
    for s in range(4):
        a(f"ds_write_b128 v1, v[40:43] offset:{KB + KCS*s + 4096}")
    a("s_mov_b64 exec, s[44:45]")
    a(f"""
    v_and_b32 v44, 63, v0              ; lane
    v_lshrrev_b32 v45, 6, v0           ; w
    v_and_b32 v46, 31, v44             ; i / a
    v_lshrrev_b32 v47, 5, v44          ; g
    v_and_b32 v48, 3, v46
    v_sub_u32 v48, 3, v48              ; s = 3 - (i&3)
    v_mul_u32_u24 v48, {KCS}, v48
    v_lshrrev_b32 v49, 2, v46
    v_lshlrev_b32 v49, 3, v49          ; 2*4*(i>>2)
    v_sub_u32 v48, v48, v49
    v_lshl_add_u32 v48, v47, 4, v48    ; + 2*8g
    v_lshlrev_b32 v49, 9, v45          ; 2*32*8*w
    v_sub_u32 v48, v48, v49
    v_add_u32 v48, {KB + 2*(2044 - 32*39)}, v48     ; vA
    v_lshlrev_b32 v49, 3, v45
    v_sub_u32 v49, v46, v49            ; a - 8w
    v_add_u32 v49, 25, v49             ; 32 + a - 8w - 7
    v_mul_u32_u24 v49, 80, v49
    v_lshl_add_u32 v49, v47, 4, v49
    v_add_u32 v49, {UB}, v49           ; vB
    """)
    a("s_waitcnt vmcnt(6)")
    a(f"""
    ds_write_b128 v1, v[8:11] offset:{KB}
    v_alignbyte_b32 v52, v9, v8, 2
    v_alignbyte_b32 v53, v10, v9, 2
    v_alignbyte_b32 v54, v11, v10, 2
    v_alignbyte_b32 v55, v12, v11, 2
    v_alignbyte_b32 v56, v13, v12, 2
    v_mov_b32 v60, v9
    v_mov_b32 v61, v10
    v_mov_b32 v62, v11
    v_mov_b32 v63, v12
    ds_write_b128 v1, v[52:55] offset:{KB + KCS}
    ds_write_b128 v1, v[60:63] offset:{KB + 2*KCS}
    v_mov_b32 v64, v53
    v_mov_b32 v65, v54
    v_mov_b32 v66, v55
    v_mov_b32 v67, v56
    ds_write_b128 v1, v[64:67] offset:{KB + 3*KCS}
    """)
    a("s_waitcnt vmcnt(0)")
    for e in range(8):
        a(f"v_mul_f32 v{24+e}, 0x3b000000, v{24+e}")
        a(f"v_mul_f32 v{32+e}, 0x3b000000, v{32+e}")
        a(f"v_add_f32 v{16+e}, v{16+e}, v{24+e}")
        a(f"v_fma_f32 v{32+e}, -v{24+e}, v{24+e}, v{32+e}")
        a(f"v_max_f32 v{32+e}, 0, v{32+e}")
    for e in range(0, 8, 2):
        bf16r_pair(a, 50, 16+e, 17+e, 16+e, 17+e)
        bf16r_pair(a, 51, 32+e, 33+e, 32+e, 33+e)
    for e in range(8):
        a(f"v_add_f32 v{32+e}, 0x3727c5ac, v{32+e}")
    for e in range(0, 8, 2):
        bf16r_pair(a, 51, 32+e, 33+e, 32+e, 33+e)
    for e in range(8):
        a(f"v_sqrt_f32 v{24+e}, v{32+e}")
    a("s_nop 0")
    for e in range(0, 8, 2):
        bf16r_pair(a, 51, 24+e, 25+e, 24+e, 25+e)
    for e in range(8):
        a(f"v_rcp_f32 v{32+e}, v{24+e}")
    for e in range(8):
        unpack(a, 68+e, 4, e)
    for e in range(8):
        a(f"v_sub_f32 v{76+e}, v{68+e}, v{16+e}")
    for e in range(0, 8, 2):
        bf16r_pair(a, 50, 76+e, 77+e, 76+e, 77+e)
    for e in range(8):
        a(f"v_mul_f32 v{84+e}, v{76+e}, v{32+e}")
    for e in range(8):
        a(f"v_fma_f32 v{76+e}, -v{84+e}, v{24+e}, v{76+e}")
    for e in range(8):
        a(f"v_fmac_f32 v{84+e}, v{76+e}, v{32+e}")
    for e in range(0, 8, 2):
        bf16r_pair(a, 92+e//2, 84+e, 85+e, 84+e, 85+e)
    a(f"""
    v_lshrrev_b32 v50, 2, v0
    v_mul_u32_u24 v50, 80, v50
    v_and_b32 v51, 3, v0
    v_lshl_add_u32 v50, v51, 4, v50
    ds_write_b128 v50, v[92:95] offset:{UB + 2560}
    """)
    for r in range(32):
        a(f"v_mov_b32 v{96+r}, 0")
    a("s_waitcnt lgkmcnt(0)")
    a("s_barrier")
    steps = [(cc, h) for cc in range(8) for h in range(2)]
    def reads(n):
        cc, h = steps[n]
        b = 128 + 16*(n & 1)
        oa = 2*(32*(7-cc) + 16*h)
        ob = 80*(7-cc) + 32*h
        a(f"ds_read_b64 v[{b}:{b+1}], v48 offset:{oa + 2048}")
        a(f"ds_read_b64 v[{b+2}:{b+3}], v48 offset:{oa + 2048 + 8}")
        a(f"ds_read_b128 v[{b+12}:{b+15}], v49 offset:{ob + 2560}")
        a(f"ds_read_b128 v[{b+8}:{b+11}], v49 offset:{ob}")
        a(f"ds_read_b64 v[{b+4}:{b+5}], v48 offset:{oa}")
        a(f"ds_read_b64 v[{b+6}:{b+7}], v48 offset:{oa + 8}")
    reads(0)
    for n in range(16):
        if n + 1 < 16:
            reads(n+1)
            a("s_waitcnt lgkmcnt(6)")
        else:
            a("s_waitcnt lgkmcnt(0)")
        b = 128 + 16*(n & 1)
        a(f"v_mfma_f32_32x32x16_bf16 v[112:127], v[{b}:{b+3}], v[{b+12}:{b+15}], v[112:127]")
        a(f"v_mfma_f32_32x32x16_bf16 v[96:111], v[{b}:{b+3}], v[{b+8}:{b+11}], v[96:111]")
        a(f"v_mfma_f32_32x32x16_bf16 v[112:127], v[{b+4}:{b+7}], v[{b+8}:{b+11}], v[112:127]")
    a("s_barrier")
    a(f"""
    v_mul_u32_u24 v50, {PBS}, v45
    v_mul_u32_u24 v51, 144, v46
    v_add_u32 v50, v50, v51
    v_lshl_add_u32 v50, v47, 4, v50
    s_nop 7
    s_nop 3
    """)
    for T in range(2):
        for q in range(4):
            a(f"ds_write_b128 v50, v[{96+16*T+4*q}:{99+16*T+4*q}] offset:{144*32*T + 32*q}")
    a(f"""
    v_lshrrev_b32 v50, 2, v0
    v_mul_u32_u24 v50, 144, v50
    v_and_b32 v51, 3, v0
    v_lshl_add_u32 v50, v51, 5, v50
    s_waitcnt lgkmcnt(0)
    s_barrier
    """)
    for w in range(4):
        a(f"ds_read_b128 v[{128+8*w}:{131+8*w}], v50 offset:{PBS*w}")
        a(f"ds_read_b128 v[{132+8*w}:{135+8*w}], v50 offset:{PBS*w + 16}")
    a("""
    s_and_b32 s43, s2, 1
    s_lshl_b32 s43, s43, 4
    s_lshr_b32 s42, s42, s43
    s_lshl_b32 s42, s42, 16
    """)
    for e in range(8):
        a(f"v_mul_f32 v{76+e}, s42, v{84+e}")
    for e in range(0, 8, 2):
        bf16r_pair(a, 50, 76+e, 77+e, 76+e, 77+e)
    a("s_waitcnt lgkmcnt(0)")
    for e in range(8):
        a(f"v_add_f32 v{128+e}, v{128+e}, v{136+e}")
        a(f"v_add_f32 v{144+e}, v{144+e}, v{152+e}")
    for e in range(8):
        a(f"v_add_f32 v{128+e}, v{128+e}, v{144+e}")
    for e in range(0, 8, 2):
        bf16r_pair(a, 50, 128+e, 129+e, 128+e, 129+e)
    for e in range(8):
        a(f"v_add_f32 v{128+e}, v{128+e}, v{76+e}")
    for e in range(0, 8, 2):
        bf16r_pair(a, 50, 128+e, 129+e, 128+e, 129+e)
    for e in range(8):
        a(f"v_add_f32 v{128+e}, v{128+e}, v{68+e}")
    for e in range(0, 8, 2):
        a(f"v_cvt_pk_bf16_f32 v{136+e//2}, v{128+e}, v{129+e}")
    a("buffer_store_dwordx4 v[136:139], v1, s[32:35], s37 offen")
    a.label(f"{name}_end")
    a("s_endpgm")
    return 160
```

```python
from common import *
from prep import load_ptrs
from conv import bf16r_pair

G1_LDS = 131072

def gen_gemm1(a, name, xt_in, write_piv):
    kernel_begin(a, name)
    load_ptrs(a)
    a("s_cmp_ge_u32 s2, 224")
    a(f"s_cbranch_scc1 {name}_end")
    a("s_waitcnt lgkmcnt(0)")
    srd(a, 32, 28, WS_SIZE)
    srd(a, 36, 20, D*DFF*2)
    a(f"""
    s_and_b32 s3, s2, 7
    s_lshl_b32 s3, s3, 1
    s_lshr_b32 s40, s2, 3
    s_and_b32 s41, s40, 1
    s_add_u32 s40, s3, s41        ; lt
    s_lshr_b32 s41, s2, 4         ; ft
    v_and_b32 v1, 63, v0          ; lane
    v_lshrrev_b32 v2, 6, v0       ; w
    v_lshrrev_b32 v3, 4, v1       ; q = L>>4
    v_and_b32 v4, 15, v1          ; slot
    v_readfirstlane_b32 s42, v2   ; w (scalar)
    v_lshlrev_b32 v5, 2, v3
    v_xor_b32 v4, v4, v5
    v_lshl_add_u32 v5, v2, 4, v3  ; row = 16w + (L>>4)
    v_mul_u32_u24 v6, 3584, v5
    v_lshl_add_u32 v6, v4, 4, v6  ; voffset w1
    v_lshlrev_b32 v7, 12, v5
    v_lshl_add_u32 v7, v4, 4, v7
    s_lshl_b32 s43, s41, 8
    s_lshl_b32 s44, s40, 8
    s_add_u32 s44, s44, {xt_in}
    s_lshl_b32 s45, s42, 12
    """)
    def dma(stage):
        buf = stage & 3
        for j in range(4):
            a(f"s_add_u32 s46, s43, {(64*stage + 4*j)*3584}")
            a(f"s_add_u32 m0, s45, {buf*32768 + j*1024}")
            a("s_nop 0")
            a("buffer_load_dwordx4 v6, s[36:39], s46 offen lds")
        for j in range(4):
            a(f"s_add_u32 s46, s44, {(64*stage + 4*j)*4096}")
            a(f"s_add_u32 m0, s45, {buf*32768 + 16384 + j*1024}")
            a("s_nop 0")
            a("buffer_load_dwordx4 v7, s[32:35], s46 offen lds")
    for st in range(3):
        dma(st)
    a(f"""
    v_and_b32 v8, 1, v2           ; wf
    v_lshrrev_b32 v9, 1, v2       ; wl
    v_lshrrev_b32 v10, 5, v1      ; g
    v_lshlrev_b32 v11, 8, v8      ; 64 wf * 4
    v_lshl_add_u32 v11, v10, 4, v11
    s_lshl_b32 s47, s41, 9
    s_add_u32 s47, s47, {WS_CS}
    """)
    for tf in range(2):
        for qd in range(4):
            a(f"buffer_load_dwordx4 v[{160+16*tf+4*qd}:{163+16*tf+4*qd}], v11, s[32:35], s47 offen offset:{128*tf + 32*qd}")
    a("""
    v_lshrrev_b32 v12, 2, v1
    v_and_b32 v12, 3, v12         ; r
    v_and_b32 v13, 3, v1          ; c
    v_lshrrev_b32 v14, 1, v3      ; q>>1
    v_lshl_add_u32 v14, v14, 3, v12
    v_lshlrev_b32 v14, 8, v14
    v_and_b32 v15, 1, v3
    v_lshl_add_u32 v14, v15, 5, v14
    v_lshrrev_b32 v15, 1, v13
    v_lshl_add_u32 v14, v15, 4, v14
    v_and_b32 v15, 1, v13
    v_lshl_add_u32 v14, v15, 3, v14
    """)
    for t in range(2):
        a(f"""
        v_lshl_add_u32 v15, v8, 1, {t}
        v_xor_b32 v15, v15, v12
        v_lshl_add_u32 v{16+t}, v15, 6, v14
        v_add_u32 v{20+t}, 0x10000, v{16+t}
        v_lshl_add_u32 v15, v9, 1, {t}
        v_xor_b32 v15, v15, v12
        v_lshl_add_u32 v{18+t}, v15, 6, v14
        v_add_u32 v{18+t}, 0x4000, v{18+t}
        v_add_u32 v{22+t}, 0x10000, v{18+t}
        """)
    for r in range(64):
        a(f"v_mov_b32 v{64+r}, 0")
    a("""
    v_mov_b32 v24, 0
    v_mov_b32 v25, 0
    v_mov_b32 v26, 0
    v_mov_b32 v27, 0
    v_mov_b32 v28, 0x3f803f80
    """)
    def frag_reads(stage, ks, p):
        buf = stage & 3
        hi = buf >= 2
        off = (buf & 1)*32768 + ks*4096
        b = 128 + 16*p
        for t in range(2):
            ad = (20 if hi else 16) + t
            a(f"ds_read_b64_tr_b16 v[{b+4*t}:{b+4*t+1}], v{ad} offset:{off}")
            a(f"ds_read_b64_tr_b16 v[{b+4*t+2}:{b+4*t+3}], v{ad} offset:{off+1024}")
        for t in range(2):
            ad = (22 if hi else 18) + t
            a(f"ds_read_b64_tr_b16 v[{b+8+4*t}:{b+8+4*t+1}], v{ad} offset:{off}")
            a(f"ds_read_b64_tr_b16 v[{b+8+4*t+2}:{b+8+4*t+3}], v{ad} offset:{off+1024}")
    def compute(p):
        b = 128 + 16*p
        for tf in range(2):
            for tl in range(2):
                acc = 64 + 32*tf + 16*tl
                a(f"v_mfma_f32_32x32x16_bf16 v[{acc}:{acc+15}], v[{b+4*tf}:{b+4*tf+3}], v[{b+8+4*tl}:{b+8+4*tl+3}], v[{acc}:{acc+15}]")
                if tf == 0:
                    for k in range(4):
                        a(f"v_dot2_f32_bf16 v{24+tl}, v{b+8+4*tl+k}, v28, v{24+tl}")
                else:
                    for k in range(4):
                        a(f"v_dot2_f32_bf16 v{26+tl}, v{b+8+4*tl+k}, v{b+8+4*tl+k}, v{26+tl}")
    for st in range(8):
        if st == 0: n = 8 + 8 + 8
        elif st == 1: n = 8 + 8 + 8
        elif st == 2: n = 8 + 8 + 8
        elif st <= 5: n = 16
        elif st == 6: n = 8
        else: n = 0
        a(f"s_waitcnt vmcnt({n})")
        a("s_barrier")
        if st + 3 < 8:
            dma(st + 3)
        frag_reads(st, 0, 0)
        for ks in range(4):
            if ks + 1 < 4:
                frag_reads(st, ks+1, (ks+1) & 1)
                a("s_waitcnt lgkmcnt(8)")
            else:
                a("s_waitcnt lgkmcnt(0)")
            compute(ks & 1)
    a("s_nop 3")
    for k in range(4):
        a(f"v_mov_b32 v{32+k}, v{24+k}")
    a("s_nop 1")
    for k in range(4):
        a(f"v_permlane32_swap_b32 v{32+k}, v{24+k}")
    a("s_nop 1")
    for k in range(4):
        a(f"v_add_f32 v{24+k}, v{24+k}, v{32+k}")
    for tl in range(2):
        a(f"""
        v_mul_f32 v{24+tl}, 0x3b000000, v{24+tl}       ; mean
        v_mul_f32 v{26+tl}, 0x3b000000, v{26+tl}
        v_fma_f32 v{26+tl}, -v{24+tl}, v{24+tl}, v{26+tl}
        v_max_f32 v{26+tl}, 0, v{26+tl}
        """)
    a("""
    v_and_b32 v36, 31, v1
    v_lshl_add_u32 v36, v9, 6, v36     ; 64 wl + (L&31)
    """)
    if write_piv:
        a(f"""
        s_cmp_lg_u32 s41, 0
        s_cbranch_scc1 {name}_nopiv
        s_and_b32 s48, s42, 1
        s_cmp_lg_u32 s48, 0
        s_cbranch_scc1 {name}_nopiv
        v_lshlrev_b32 v37, 2, v36
        s_lshl_b32 s48, s40, 9
        s_add_u32 s48, s48, {WS_ST3}
        s_add_u32 s49, s48, 8192
        s_add_u32 s50, s48, 16384
        v_mov_b32 v38, 0
        v_cmp_gt_u32 vcc, 32, v1
        s_and_saveexec_b64 s[52:53], vcc
        buffer_store_dword v24, v37, s[32:35], s48 offen
        buffer_store_dword v25, v37, s[32:35], s48 offen offset:128
        buffer_store_dword v38, v37, s[32:35], s49 offen
        buffer_store_dword v38, v37, s[32:35], s49 offen offset:128
        buffer_store_dword v38, v37, s[32:35], s50 offen
        buffer_store_dword v38, v37, s[32:35], s50 offen offset:128
        s_mov_b64 exec, s[52:53]
        """)
        a.label(f"{name}_nopiv")
    bf16r_pair(a, 39, 24, 25, 40, 41)
    bf16r_pair(a, 39, 26, 27, 42, 43)
    a("v_add_f32 v42, 0x3727c5ac, v42")
    a("v_add_f32 v43, 0x3727c5ac, v43")
    bf16r_pair(a, 39, 42, 43, 42, 43)
    a("v_sqrt_f32 v42, v42")
    a("v_sqrt_f32 v43, v43")
    a("s_nop 0")
    bf16r_pair(a, 39, 42, 43, 42, 43)
    a("v_rcp_f32 v42, v42")
    a("v_rcp_f32 v43, v43")
    a(f"""
    v_mul_u32_u24 v44, 3584, v36
    v_lshl_add_u32 v44, v8, 7, v44
    v_lshl_add_u32 v44, v10, 4, v44
    v_add_u32 v45, {32*3584}, v44
    s_mul_i32 s48, s40, {128*3584}
    s_lshl_b32 s49, s41, 8
    s_add_u32 s48, s48, s49
    s_add_u32 s48, s48, {WS_H}
    """)
    for tf in range(2):
        for tl in range(2):
            acc = 64 + 32*tf + 16*tl
            for r in range(16):
                cs = 160 + 16*tf + r
                a(f"v_fma_f32 v{acc+r}, -v{40+tl}, v{cs}, v{acc+r}")
            for r in range(16):
                a(f"v_mul_f32 v{acc+r}, v{acc+r}, v{42+tl}")
            for r in range(16):
                a(f"v_max_f32 v{acc+r}, 0, v{acc+r}")
            for r in range(0, 16, 2):
                a(f"v_cvt_pk_bf16_f32 v{48+r//2}, v{acc+r}, v{acc+r+1}")
            a("s_nop 1")
            for qp in range(2):
                a(f"v_permlane32_swap_b32 v{48+4*qp}, v{50+4*qp}")
                a(f"v_permlane32_swap_b32 v{49+4*qp}, v{51+4*qp}")
            for qp in range(2):
                a(f"buffer_store_dwordx4 v[{48+4*qp}:{51+4*qp}], v{44+tl}, s[32:35], s48 offen offset:{64*tf + 32*qp}")
            a("s_nop 1")
    a.label(f"{name}_end")
    a("s_endpgm")
    return 192
```

```python
from common import *
from prep import load_ptrs
from conv import bf16r_pair

G2_LDS = 131072 + 8192
RB = 131072

def gen_gemm2(a, name, xt_res, xt_out, final):
    NST = 14
    kernel_begin(a, name)
    load_ptrs(a)
    a("s_cmp_ge_u32 s2, 256")
    a(f"s_cbranch_scc1 {name}_end")
    a("s_waitcnt lgkmcnt(0)")
    srd(a, 32, 28, WS_SIZE)
    srd(a, 36, 22, D*DFF*2)
    if final:
        srd(a, 56, 24, L*D*2)
    a(f"""
    s_and_b32 s3, s2, 7
    s_lshl_b32 s3, s3, 2
    s_lshr_b32 s40, s2, 3
    s_and_b32 s41, s40, 3
    s_add_u32 s40, s3, s41        ; lt (0..31)
    s_lshr_b32 s41, s2, 5         ; dt (0..7)
    v_and_b32 v1, 63, v0          ; lane
    v_lshrrev_b32 v2, 6, v0       ; w
    v_lshrrev_b32 v3, 4, v1       ; q = L>>4
    v_lshrrev_b32 v4, 3, v1
    v_readfirstlane_b32 s42, v2
    v_and_b32 v5, 7, v1
    v_lshrrev_b32 v6, 1, v4
    v_and_b32 v6, 1, v6
    v_lshlrev_b32 v6, 2, v6
    v_xor_b32 v5, v5, v6
    v_lshl_add_u32 v6, v2, 5, v4  ; row
    v_lshlrev_b32 v6, 10, v6      ; *1024
    v_lshl_add_u32 v6, v5, 4, v6  ; voffset w2
    v_lshl_add_u32 v7, v2, 2, v3  ; 4w + q
    v_and_b32 v5, 15, v1
    v_xor_b32 v5, v5, v7
    v_mul_u32_u24 v7, 3584, v7
    v_lshl_add_u32 v7, v5, 4, v7  ; voffset h
    s_lshl_b32 s43, s41, 7
    s_mul_i32 s44, s40, {64*3584}
    s_add_u32 s44, s44, {WS_H}
    s_lshl_b32 s45, s42, 12
    s_lshl_b32 s46, s42, 10
    """)
    a(f"""
    v_lshl_add_u32 v8, v2, 4, v4
    v_lshlrev_b32 v8, 12, v8
    v_and_b32 v5, 7, v1
    v_lshl_add_u32 v8, v5, 4, v8
    s_lshl_b32 s47, s41, 18       ; dt*64*4096
    s_lshl_b32 s48, s40, 7        ; lt*128
    s_add_u32 s47, s47, s48
    s_add_u32 s48, s47, {xt_res}
    s_lshl_b32 s49, s42, 11       ; 16 w rows * 128
    s_add_u32 m0, s49, {RB}
    s_nop 0
    buffer_load_dwordx4 v8, s[32:35], s48 offen lds
    s_add_u32 s48, s48, {8*4096}
    s_add_u32 m0, s49, {RB + 1024}
    s_nop 0
    buffer_load_dwordx4 v8, s[32:35], s48 offen lds
    """)
    def dma(stage):
        buf = stage & 3
        for j in range(4):
            a(f"s_add_u32 s50, s43, {(128*stage + 8*j)*1024}")
            a(f"s_add_u32 m0, s45, {buf*32768 + j*1024}")
            a("s_nop 0")
            a("buffer_load_dwordx4 v6, s[36:39], s50 offen lds")
        for j in range(4):
            a(f"s_add_u32 s50, s44, {16*j*3584 + 256*stage}")
            a(f"s_add_u32 m0, s46, {buf*32768 + 16384 + j*4096}")
            a("s_nop 0")
            a("buffer_load_dwordx4 v7, s[32:35], s50 offen lds")
    for st in range(3):
        dma(st)
    a("""
    v_and_b32 v9, 1, v2           ; td
    v_lshrrev_b32 v10, 1, v2      ; tl
    v_lshrrev_b32 v11, 5, v1      ; g
    v_lshrrev_b32 v12, 2, v1
    v_and_b32 v12, 3, v12         ; r
    v_and_b32 v13, 3, v1          ; c
    v_lshrrev_b32 v14, 1, v3
    v_lshl_add_u32 v14, v14, 3, v12
    v_lshlrev_b32 v14, 7, v14
    v_lshrrev_b32 v15, 1, v12
    v_xor_b32 v15, v15, v9
    v_lshl_add_u32 v14, v15, 6, v14
    v_and_b32 v15, 1, v3
    v_lshl_add_u32 v14, v15, 5, v14
    v_lshrrev_b32 v15, 1, v13
    v_lshl_add_u32 v14, v15, 4, v14
    v_and_b32 v15, 1, v13
    v_lshl_add_u32 v16, v15, 3, v14      ; A low
    v_add_u32 v17, 0x10000, v16          ; A high
    v_and_b32 v18, 31, v1                ; n
    v_lshl_add_u32 v14, v10, 5, v18
    v_lshlrev_b32 v14, 8, v14
    v_and_b32 v15, 15, v18
    v_xor_b32 v15, v15, v11
    v_lshl_add_u32 v14, v15, 4, v14
    v_add_u32 v14, 0x4000, v14
    """)
    for ks in range(8):
        a(f"v_xor_b32 v{20+ks}, {32*ks}, v14")
        a(f"v_add_u32 v{28+ks}, 0x10000, v{20+ks}")
    for r in range(16):
        a(f"v_mov_b32 v{64+r}, 0")
    if not final:
        a(f"""
        v_lshl_add_u32 v19, v10, 5, v18
        v_lshlrev_b32 v19, 2, v19
        s_lshl_b32 s51, s40, 8
        s_add_u32 s51, s51, {WS_ST3}
        buffer_load_dword v40, v19, s[32:35], s51 offen
        """)
    extra = 0 if final else 1
    def frag_reads(stage, ks, p):
        buf = stage & 3
        hi = buf >= 2
        b = 96 + 8*p
        off = (buf & 1)*32768
        ad = 17 if hi else 16
        a(f"ds_read_b64_tr_b16 v[{b}:{b+1}], v{ad} offset:{off + ks*2048}")
        a(f"ds_read_b64_tr_b16 v[{b+2}:{b+3}], v{ad} offset:{off + ks*2048 + 512}")
        bd = (28 if hi else 20) + ks
        a(f"ds_read_b128 v[{b+4}:{b+7}], v{bd} offset:{off}")
    NP = 4
    for st in range(NST):
        later = min(st + 2, NST - 1) - st
        n = 8*later + (extra if st <= 2 else 0)
        a(f"s_waitcnt vmcnt({n})")
        a("s_barrier")
        if st + 3 < NST:
            dma(st + 3)
        frag_reads(st, 0, 0)
        frag_reads(st, 1, 1)
        for ks in range(8):
            if ks + 2 < 8:
                frag_reads(st, ks+2, (ks+2) % NP)
                a("s_waitcnt lgkmcnt(6)")
            elif ks + 1 < 8:
                a("s_waitcnt lgkmcnt(3)")
            else:
                a("s_waitcnt lgkmcnt(0)")
            b = 96 + 8*(ks % NP)
            a(f"v_mfma_f32_32x32x16_bf16 v[64:79], v[{b}:{b+3}], v[{b+4}:{b+7}], v[64:79]")
    a(f"""
    v_lshrrev_b32 v14, 1, v3
    v_lshl_add_u32 v14, v14, 2, v12
    v_lshl_add_u32 v14, v9, 5, v14
    v_lshlrev_b32 v14, 7, v14
    v_lshl_add_u32 v14, v10, 6, v14
    v_and_b32 v15, 1, v3
    v_lshl_add_u32 v14, v15, 5, v14
    v_lshl_add_u32 v14, v13, 3, v14
    v_add_u32 v14, {RB}, v14
    """)
    for qd in range(4):
        a(f"ds_read_b64_tr_b16 v[{80+2*qd}:{81+2*qd}], v14 offset:{1024*qd}")
    a("s_nop 7")
    for r in range(0, 16, 2):
        bf16r_pair(a, 41, 64+r, 65+r, 64+r, 65+r)
    a("s_waitcnt lgkmcnt(0)")
    for r in range(16):
        if r % 2 == 0:
            a(f"v_lshlrev_b32 v41, 16, v{80+r//2}")
        else:
            a(f"v_and_b32 v41, 0xffff0000, v{80+r//2}")
        a(f"v_add_f32 v{64+r}, v{64+r}, v41")
    for r in range(0, 16, 2):
        a(f"v_cvt_pk_bf16_f32 v{88+r//2}, v{64+r}, v{65+r}")
    if final:
        a("s_nop 1")
        for qp in range(2):
            a(f"v_permlane32_swap_b32 v{88+4*qp}, v{90+4*qp}")
            a(f"v_permlane32_swap_b32 v{89+4*qp}, v{91+4*qp}")
        a(f"""
        v_lshl_add_u32 v14, v10, 5, v18
        v_lshlrev_b32 v14, 10, v14
        v_lshl_add_u32 v14, v9, 6, v14
        v_lshl_add_u32 v14, v11, 4, v14
        s_lshl_b32 s50, s40, 16
        s_lshl_b32 s51, s41, 7
        s_add_u32 s50, s50, s51
        buffer_store_dwordx4 v[88:91], v14, s[56:59], s50 offen
        buffer_store_dwordx4 v[92:95], v14, s[56:59], s50 offen offset:32
        """)
    else:
        a("v_mov_b32 v42, 0")
        a("v_mov_b32 v43, 0")
        a(f"""
        v_lshl_add_u32 v14, v9, 3, v11       ; 8 td + g
        v_lshlrev_b32 v14, 9, v14            ; (32 td + 4 g) * 128
        v_lshl_add_u32 v15, v10, 5, v18
        v_lshl_add_u32 v14, v15, 1, v14
        v_add_u32 v14, {RB}, v14
        """)
        for r in range(16):
            qd, e = r // 4, r % 4
            pk = 88 + r//2
            if r % 2 == 0:
                a(f"v_lshlrev_b32 v41, 16, v{pk}")
                a(f"ds_write_b16 v14, v{pk} offset:{(8*qd + e)*128}")
            else:
                a(f"v_and_b32 v41, 0xffff0000, v{pk}")
                a(f"ds_write_b16_d16_hi v14, v{pk} offset:{(8*qd + e)*128}")
            a("v_sub_f32 v41, v41, v40")
            a("v_add_f32 v42, v42, v41")
            a("v_fmac_f32 v43, v41, v41")
        a("""
        s_nop 1
        v_permlane32_swap_b32 v42, v43
        s_nop 1
        v_add_f32 v42, v42, v43
        """)
        a(f"""
        v_lshl_add_u32 v15, v10, 5, v18
        v_lshlrev_b32 v15, 2, v15
        v_lshl_add_u32 v15, v11, 13, v15     ; + g*8192
        s_lshl_b32 s51, s40, 8
        s_add_u32 s51, s51, {WS_ST3 + 8192}
        buffer_atomic_add_f32 v42, v15, s[32:35], s51 offen
        s_waitcnt lgkmcnt(0)
        s_barrier
        v_lshlrev_b32 v14, 5, v0
        v_add_u32 v14, {RB}, v14
        ds_read_b128 v[96:99], v14
        ds_read_b128 v[100:103], v14 offset:16
        v_lshrrev_b32 v15, 2, v0
        v_lshlrev_b32 v15, 12, v15
        v_and_b32 v14, 3, v0
        v_lshl_add_u32 v15, v14, 5, v15
        s_add_u32 s48, s47, {xt_out}
        s_waitcnt lgkmcnt(0)
        buffer_store_dwordx4 v[96:99], v15, s[32:35], s48 offen
        buffer_store_dwordx4 v[100:103], v15, s[32:35], s48 offen offset:16
        """)
    a.label(f"{name}_end")
    a("s_endpgm")
    return 128
```

```python
from common import *

LOG2E = "0x3fb8aa3b"
INV2PI = "0x3e22f983"

def load_ptrs(a):
    a("s_load_dwordx16 s[4:19], s[0:1], 0")
    a("s_load_dwordx8 s[20:27], s[0:1], 64")
    a("s_load_dwordx2 s[28:29], s[0:1], 96")

def unpack(a, dst, base, e):
    if e % 2 == 0:
        a(f"v_lshlrev_b32 v{dst}, 16, v{base + e//2}")
    else:
        a(f"v_and_b32 v{dst}, 0xffff0000, v{base + e//2}")

def gen_prep(a, name="prep_kernel"):
    kernel_begin(a, name)
    load_ptrs(a)
    a("s_cmp_ge_u32 s2, 604")
    a(f"s_cbranch_scc1 {name}_end")
    a("s_waitcnt lgkmcnt(0)")
    srd(a, 32, 28, WS_SIZE)
    a("s_cmp_ge_u32 s2, 576")
    a(f"s_cbranch_scc1 {name}_colsum")
    a("s_cmp_ge_u32 s2, 512")
    a(f"s_cbranch_scc1 {name}_ln")
    srd(a, 36, 6, 131072)
    srd(a, 40, 8, 131072)
    srd(a, 44, 10, 131072)
    srd(a, 48, 12, 131072)
    a("""
    v_and_b32 v1, 63, v0
    v_and_b32 v2, 15, v0          ; i
    v_lshrrev_b32 v3, 4, v1       ; kq
    v_lshrrev_b32 v4, 6, v0       ; w
    v_lshlrev_b32 v5, 6, v4       ; w*64 bytes
    v_lshl_add_u32 v5, v3, 4, v5  ; + kq*16
    s_lshl_b32 s3, s2, 8          ; d*256 bytes
    buffer_load_dwordx4 v[8:11], v5, s[36:39], s3 offen
    buffer_load_dwordx4 v[12:15], v5, s[40:43], s3 offen
    buffer_load_dwordx4 v[16:19], v5, s[44:47], s3 offen
    buffer_load_dwordx4 v[20:23], v5, s[48:51], s3 offen
    s_lshr_b32 s3, s2, 1
    s_lshl_b32 s3, s3, 2
    s_add_u32 s14, s14, s3
    s_addc_u32 s15, s15, 0
    s_load_dword s60, s[14:15], 0
    """)
    a("""
    v_lshlrev_b32 v6, 3, v2
    v_cvt_f32_u32 v24, v6
    v_lshrrev_b32 v6, 3, v2
    v_lshlrev_b32 v6, 7, v6
    v_and_b32 v7, 7, v2
    v_add_u32 v6, v6, v7
    v_cvt_f32_u32 v25, v6
    v_cmp_gt_u32 vcc, 8, v2       ; i < 8
    v_lshrrev_b32 v6, 2, v2
    v_lshlrev_b32 v6, 7, v6
    v_and_b32 v7, 3, v2
    v_lshl_add_u32 v6, v7, 1, v6
    v_add_u32 v6, 256, v6         ; case i<8
    v_and_b32 v7, 7, v2           ; x = i-8 (when i>=8)
    v_lshrrev_b32 v28, 1, v7
    v_lshlrev_b32 v28, 7, v28
    v_and_b32 v7, 1, v7
    v_lshl_add_u32 v28, v7, 2, v28
    v_add_u32 v28, 512, v28
    v_cndmask_b32 v6, v28, v6, vcc
    v_cvt_f32_u32 v26, v6
    v_lshlrev_b32 v6, 7, v2
    v_add_u32 v6, 1024, v6
    v_mov_b32 v7, 2048
    v_cndmask_b32 v6, v7, v6, vcc
    v_cvt_f32_u32 v27, v6
    """)
    a("s_waitcnt lgkmcnt(0)")
    a("""
    s_and_b32 s61, s2, 1
    s_lshl_b32 s61, s61, 4
    s_lshr_b32 s60, s60, s61
    s_lshl_b32 s60, s60, 16
    v_mov_b32 v6, s60
    v_mul_f32 v6, %s, v6
    v_exp_f32 v6, v6
    s_nop 0
    v_cvt_pk_bf16_f32 v6, v6, v6
    v_lshlrev_b32 v29, 16, v6     ; v29 = dt
    """ % LOG2E)
    for r in range(12):
        a(f"v_mov_b32 v{100+r}, 0")
    a("s_waitcnt vmcnt(0)")
    for s in range(8):
        unpack(a, 64, 8, s)
        unpack(a, 65, 12, s)
        unpack(a, 66, 16, s)
        unpack(a, 67, 20, s)
        a(f"""
        v_mul_f32 v64, {LOG2E}, v64
        v_exp_f32 v64, v64
        v_mul_f32 v65, v65, v29
        v_cvt_pk_bf16_f32 v64, v64, v64
        v_lshlrev_b32 v64, 16, v64
        v_mul_f32 v64, v64, v29
        v_mul_f32 v{32+s}, 0xbfb8aa3b, v64
        v_mul_f32 v{40+s}, {INV2PI}, v65
        v_mul_f32 v{48+s}, v66, v29
        v_mul_f32 v{56+s}, v67, v29
        """)
    P = [24, 25, 26, 27]
    for s in range(8):
        for u in range(4): a(f"v_mul_f32 v{64+u}, v{32+s}, v{P[u]}")
        for u in range(4): a(f"v_mul_f32 v{68+u}, v{40+s}, v{P[u]}")
        for u in range(4): a(f"v_exp_f32 v{72+u}, v{64+u}")
        for u in range(4): a(f"v_fract_f32 v{68+u}, v{68+u}")
        for u in range(4): a(f"v_cos_f32 v{76+u}, v{68+u}")
        for u in range(4): a(f"v_sin_f32 v{80+u}, v{68+u}")
        for u in range(4): a(f"v_mul_f32 v{76+u}, v{72+u}, v{76+u}")
        for u in range(4): a(f"v_mul_f32 v{80+u}, v{72+u}, v{80+u}")
        for T in range(3): a(f"v_mul_f32 v{84+T}, v{48+s}, v{77+T}")
        for T in range(3): a(f"v_mul_f32 v{87+T}, v{48+s}, v{81+T}")
        for T in range(3): a(f"v_fma_f32 v{90+T}, -v{56+s}, v{81+T}, v{84+T}")
        for T in range(3): a(f"v_fma_f32 v{93+T}, -v{56+s}, v{77+T}, -v{87+T}")
        a("s_nop 1")
        for T in range(3): a(f"v_mfma_f32_16x16x4_f32 v[{100+4*T}:{103+4*T}], v{90+T}, v76, v[{100+4*T}:{103+4*T}]")
        for T in range(3): a(f"v_mfma_f32_16x16x4_f32 v[{100+4*T}:{103+4*T}], v{93+T}, v80, v[{100+4*T}:{103+4*T}]")
    a("""
    v_mul_u32_u24 v6, 8704, v4
    v_lshl_add_u32 v6, v2, 5, v6      ; base = w*8704 + 32 i
    v_cmp_gt_u32 vcc, 2, v3           ; kq < 2
    v_lshrrev_b32 v7, 1, v3
    v_lshlrev_b32 v7, 9, v7           ; 128*(kq>>1)*4
    v_and_b32 v28, 1, v3
    v_lshl_add_u32 v7, v28, 4, v7     ; + 4*(kq&1)*4
    v_add_u32 v30, v6, v7             ; T0 base (+4r)
    v_lshlrev_b32 v7, 9, v3           ; 128*kq*4
    v_add_u32 v31, v6, v7
    v_add_u32 v31, 1024, v31
    v_lshlrev_b32 v7, 10, v3          ; 256*kq*4
    v_add_u32 v64, v6, v7
    v_lshlrev_b32 v7, 11, v3          ; 512*kq*4
    v_add_u32 v65, v6, v7
    v_add_u32 v65, 4096, v65
    v_add_u32 v66, 8192, v6           ; T2 case b
    s_nop 7
    """)
    for r in range(4):
        a(f"ds_write_b32 v30, v{100+r} offset:{4*r}")
    for r in range(4):
        a(f"v_add_u32 v67, {8*r}, v31")
        a(f"v_add_u32 v68, {512*(r>>1) + 16*(r&1)}, v64")
        a(f"v_cndmask_b32 v67, v68, v67, vcc")
        a(f"ds_write_b32 v67, v{104+r}")
    for r in range(4):
        a(f"v_add_u32 v67, {512*r}, v65")
        a(f"v_cndmask_b32 v67, v66, v67, vcc")
        a(f"ds_write_b32 v67, v{108+r}")
    a("s_waitcnt lgkmcnt(0)")
    a("s_barrier")
    a("""
    v_lshlrev_b32 v6, 3, v0
    v_sub_u32 v6, 2047, v6        ; j0 = 2047 - 8t
    """)
    for e in range(0, 8, 2):
        a(f"""
        v_subrev_u32 v7, {e}, v6
        v_subrev_u32 v28, {e+1}, v6
        v_cvt_f32_u32 v7, v7
        v_cvt_f32_u32 v28, v28
        v_cvt_pk_bf16_f32 v7, v7, v28
        v_and_b32 v28, 0xffff0000, v7
        v_lshlrev_b32 v7, 16, v7
        v_cvt_u32_f32 v7, v7
        v_cvt_u32_f32 v28, v28
        v_lshlrev_b32 v{8+e}, 2, v7
        v_lshlrev_b32 v{9+e}, 2, v28
        """)
    for e in range(8):
        for w in range(4):
            a(f"ds_read_b32 v{32+4*e+w}, v{8+e} offset:{8704*w}")
    a("s_waitcnt lgkmcnt(0)")
    for e in range(8):
        b = 32 + 4*e
        a(f"v_add_f32 v{b}, v{b}, v{b+1}")
        a(f"v_add_f32 v{b+2}, v{b+2}, v{b+3}")
        a(f"v_add_f32 v{b}, v{b}, v{b+2}")
        a(f"v_add_f32 v{b}, v{b}, v{b}")
    for e in range(0, 8, 2):
        a(f"v_cvt_pk_bf16_f32 v{64+e//2}, v{32+4*e}, v{36+4*e}")
    a(f"""
    s_mul_i32 s3, s2, {KR_STRIDE}
    s_add_u32 s3, s3, {WS_KR}
    v_lshlrev_b32 v6, 4, v0
    buffer_store_dwordx4 v[64:67], v6, s[32:35], s3 offen
    v_mov_b32 v68, 0
    v_mov_b32 v69, 0
    v_mov_b32 v70, 0
    v_mov_b32 v71, 0
    v_cmp_gt_u32 vcc, 8, v0
    s_and_saveexec_b64 s[62:63], vcc
    s_cbranch_execz {name}_end
    v_add_u32 v6, 4096, v6
    buffer_store_dwordx4 v[68:71], v6, s[32:35], s3 offen
    s_branch {name}_end
    """)
    a.label(f"{name}_ln")
    srd(a, 36, 4, 2097152)
    a("""
    s_sub_u32 s3, s2, 512         ; b
    v_and_b32 v1, 63, v0
    v_lshrrev_b32 v4, 6, v0       ; w
    v_lshlrev_b32 v5, 13, v4      ; w*8 rows*1024
    v_lshl_add_u32 v5, v1, 4, v5
    s_lshl_b32 s40, s3, 15        ; b*32 rows*1024
    """)
    for rr in range(8):
        if rr < 4:
            a(f"buffer_load_dwordx4 v[{8+4*rr}:{11+4*rr}], v5, s[36:39], s40 offen offset:{1024*rr}")
        else:
            if rr == 4:
                a("v_add_u32 v6, 4096, v5")
            a(f"buffer_load_dwordx4 v[{8+4*rr}:{11+4*rr}], v6, s[36:39], s40 offen offset:{1024*(rr-4)}")
    a("v_mov_b32 v7, 0x3f803f80")
    a("""
    v_mul_u32_u24 v40, 8704, v4
    v_lshl_add_u32 v40, v1, 4, v40
    """)
    for rr in range(8):
        a(f"v_mov_b32 v{48+rr}, 0")
    for rr in range(8):
        a(f"s_waitcnt vmcnt({7-rr})")
        a(f"ds_write_b128 v40, v[{8+4*rr}:{11+4*rr}] offset:{1088*rr}")
        for q in range(4):
            a(f"v_dot2_f32_bf16 v{48+rr}, v{8+4*rr+q}, v7, v{48+rr}")
    def wave_reduce(base):
        a("s_nop 3")
        for rr in range(8): a(f"v_add_f32_dpp v{56+rr}, v{base+rr}, v{base+rr} quad_perm:[1,0,3,2] row_mask:0xf bank_mask:0xf")
        for rr in range(8): a(f"v_add_f32_dpp v{base+rr}, v{56+rr}, v{56+rr} quad_perm:[2,3,0,1] row_mask:0xf bank_mask:0xf")
        for rr in range(8): a(f"v_add_f32_dpp v{56+rr}, v{base+rr}, v{base+rr} row_half_mirror row_mask:0xf bank_mask:0xf")
        for rr in range(8): a(f"v_add_f32_dpp v{base+rr}, v{56+rr}, v{56+rr} row_mirror row_mask:0xf bank_mask:0xf")
        for rr in range(8): a(f"v_mov_b32 v{56+rr}, v{base+rr}")
        a("s_nop 1")
        for rr in range(8): a(f"v_permlane16_swap_b32 v{56+rr}, v{base+rr}")
        a("s_nop 1")
        for rr in range(8): a(f"v_add_f32 v{base+rr}, v{base+rr}, v{56+rr}")
        for rr in range(8): a(f"v_mov_b32 v{56+rr}, v{base+rr}")
        a("s_nop 1")
        for rr in range(8): a(f"v_permlane32_swap_b32 v{56+rr}, v{base+rr}")
        a("s_nop 1")
        for rr in range(8): a(f"v_add_f32 v{base+rr}, v{base+rr}, v{56+rr}")
    wave_reduce(48)
    for rr in range(8):
        a(f"v_mul_f32 v{48+rr}, 0x3b000000, v{48+rr}")
        a(f"v_mov_b32 v{64+rr}, 0")
    for rr in range(8):
        for e in range(8):
            unpack(a, 72, 8+4*rr, e)
            a(f"v_sub_f32 v72, v72, v{48+rr}")
            a(f"v_fmac_f32 v{64+rr}, v72, v72")
    wave_reduce(64)
    a("v_mov_b32 v72, v48")
    a("v_mov_b32 v73, v64")
    for rr in range(1, 8):
        a(f"v_cmp_eq_u32 vcc, {rr}, v1")
        a("s_nop 1")
        a(f"v_cndmask_b32 v72, v72, v{48+rr}, vcc")
        a(f"v_cndmask_b32 v73, v73, v{64+rr}, vcc")
    a(f"""
    v_lshl_add_u32 v74, v4, 3, v1     ; 8w + lane
    v_lshlrev_b32 v74, 2, v74
    s_lshl_b32 s41, s3, 7             ; b*32*4
    s_add_u32 s41, s41, {WS_ST1}
    v_mov_b32 v75, 0
    v_cmp_gt_u32 vcc, 8, v1
    s_and_saveexec_b64 s[62:63], vcc
    buffer_store_dword v72, v74, s[32:35], s41 offen
    s_add_u32 s42, s41, 8192
    buffer_store_dword v75, v74, s[32:35], s42 offen
    s_add_u32 s42, s41, 16384
    buffer_store_dword v73, v74, s[32:35], s42 offen
    s_mov_b64 exec, s[62:63]
    s_waitcnt lgkmcnt(0)
    s_barrier
    """)
    a("""
    v_lshrrev_b32 v6, 4, v1
    v_lshrrev_b32 v7, 2, v1
    v_and_b32 v7, 3, v7
    v_and_b32 v28, 3, v1
    v_mul_u32_u24 v7, 1088, v7
    v_lshl_add_u32 v7, v6, 5, v7
    v_lshl_add_u32 v7, v28, 3, v7
    v_lshl_add_u32 v7, v4, 8, v7      ; + w*256 bytes
    """)
    for st in range(2):
        for g in range(8):
            a(f"ds_read_b64_tr_b16 v[{8+16*st+2*g}:{9+16*st+2*g}], v7 offset:{128*st + 4352*g}")
    a(f"""
    v_lshl_add_u32 v6, v4, 7, v1
    v_lshlrev_b32 v6, 12, v6
    s_lshl_b32 s41, s3, 6
    s_add_u32 s41, s41, {WS_XT0}
    s_add_u32 s42, s41, {64*4096}
    s_waitcnt lgkmcnt(0)
    """)
    for st in range(2):
        for k in range(4):
            a(f"buffer_store_dwordx4 v[{8+16*st+4*k}:{11+16*st+4*k}], v6, s[32:35], s{41+st} offen offset:{16*k}")
    a(f"s_branch {name}_end")
    a.label(f"{name}_colsum")
    srd(a, 36, 20, D*DFF*2)
    a("""
    s_sub_u32 s3, s2, 576
    v_and_b32 v1, 7, v0           ; cg
    v_lshrrev_b32 v2, 3, v0       ; rg
    v_mul_u32_u24 v5, 57344, v2   ; rg*16*3584
    v_lshl_add_u32 v5, v1, 4, v5
    s_lshl_b32 s40, s3, 7
    """)
    for rr in range(16):
        a(f"buffer_load_dwordx4 v[{8+4*rr}:{11+4*rr}], v5, s[36:39], s40 offen")
        a("s_add_u32 s40, s40, 3584")
    for e in range(8):
        a(f"v_mov_b32 v{80+e}, 0")
    for rr in range(16):
        a(f"s_waitcnt vmcnt({15-rr})")
        for e in range(8):
            unpack(a, 72, 8+4*rr, e)
            a(f"v_add_f32 v{80+e}, v{80+e}, v72")
    a("""
    v_lshlrev_b32 v6, 5, v0
    ds_write_b128 v6, v[80:83]
    ds_write_b128 v6, v[84:87] offset:16
    s_waitcnt lgkmcnt(0)
    s_barrier
    v_cmp_gt_u32 vcc, 64, v0
    s_and_saveexec_b64 s[62:63], vcc
    """)
    a(f"s_cbranch_execz {name}_end")
    a("v_lshlrev_b32 v6, 2, v0")
    for k in range(32):
        a(f"ds_read_b32 v{8+k}, v6 offset:{256*k}")
    a("s_waitcnt lgkmcnt(0)")
    for k in range(1, 32):
        a(f"v_add_f32 v8, v8, v{8+k}")
    a(f"""
    s_lshl_b32 s41, s3, 8
    s_add_u32 s41, s41, {WS_CS}
    buffer_store_dword v8, v6, s[32:35], s41 offen
    """)
    a.label(f"{name}_end")
    a("s_endpgm")
    return 128
```

```python
import sys
from common import *
from prep import gen_prep
from conv import gen_conv, CONV_LDS
from gemm1 import gen_gemm1, G1_LDS
from gemm2 import gen_gemm2, G2_LDS

HEADER = open("interleave_layers__ssm_conv_s4d__dense_activation_relu__prompt.s.ref").read().split("; Override launch")[0]

def main(out):
    a = Asm()
    descs = []
    v = gen_prep(a, "prep_kernel"); descs.append(("prep_kernel", v))
    v = gen_conv(a, "conv1_kernel", WS_XT0, WS_XT1, WS_ST1); descs.append(("conv1_kernel", v))
    v = gen_gemm1(a, "gemm1a_kernel", WS_XT1, True); descs.append(("gemm1a_kernel", v))
    v = gen_gemm2(a, "gemm2a_kernel", WS_XT1, WS_XT2, False); descs.append(("gemm2a_kernel", v))
    v = gen_conv(a, "conv2_kernel", WS_XT2, WS_XT3, WS_ST3); descs.append(("conv2_kernel", v))
    v = gen_gemm1(a, "gemm1b_kernel", WS_XT3, False); descs.append(("gemm1b_kernel", v))
    v = gen_gemm2(a, "gemm2b_kernel", WS_XT3, None, True); descs.append(("gemm2b_kernel", v))
    launches = [
        ("prep_kernel", 604, 256, 34816),
        ("conv1_kernel", 512, 256, CONV_LDS),
        ("gemm1a_kernel", 224, 256, G1_LDS),
        ("gemm2a_kernel", 256, 256, G2_LDS),
        ("conv2_kernel", 512, 256, CONV_LDS),
        ("gemm1b_kernel", 224, 256, G1_LDS),
        ("gemm2b_kernel", 256, 256, G2_LDS),
    ]
    s = HEADER
    for k, g, b, l in launches:
        s += f"; @launch kernel={k} grid=({g},1,1) block=({b},1,1) lds={l}\n"
    s += '.amdgcn_target "amdgcn-amd-amdhsa--gfx950"\n'
    s += a.text()
    for k, v in descs:
        s += kernel_desc(k, v)
    open(out, "w").write(s)

if __name__ == "__main__":
    main(sys.argv[1] if len(sys.argv) > 1 else "interleave_layers__ssm_conv_s4d__dense_activation_relu__prompt.s")
```

```python
L = 2048; D = 512; NM = 128; DFF = 1792
MB = 1 << 20
WS_XT0 = 0
WS_XT1 = 2 * MB
WS_XT2 = 4 * MB
WS_XT3 = 6 * MB
WS_H   = 8 * MB
WS_KR  = 16 * MB
KR_STRIDE = 4224
WS_ST1 = 19 * MB
WS_ST3 = 19 * MB + 65536
WS_CS  = 19 * MB + 131072
WS_SIZE = 268435456

class Asm:
    def __init__(self):
        self.lines = []
    def __call__(self, s):
        for ln in s.strip("\n").split("\n"):
            ln = ln.strip()
            if ln:
                self.lines.append("    " + ln)
    def label(self, l):
        self.lines.append(l + ":")
    def raw(self, s):
        self.lines.append(s)
    def text(self):
        return "\n".join(self.lines) + "\n"

def srd(a, d, b, nbytes):
    a(f"s_mov_b32 s{d}, s{b}")
    a(f"s_mov_b32 s{d+1}, s{b+1}")
    a(f"s_mov_b32 s{d+2}, {nbytes}")
    a(f"s_mov_b32 s{d+3}, 0x00020000")

def kernel_begin(a, name):
    a.raw(".text")
    a.raw(f".globl {name}")
    a.raw(".p2align 8")
    a.raw(f".type {name},@function")
    a.label(name)

def kernel_desc(name, vgpr, sgpr=96):
    acc = (vgpr + 3) // 4 * 4
    return f""".section .rodata,"a"
.p2align 6
.amdhsa_kernel {name}
  .amdhsa_next_free_vgpr {vgpr}
  .amdhsa_next_free_sgpr {sgpr}
  .amdhsa_accum_offset {acc}
  .amdhsa_group_segment_fixed_size 0
  .amdhsa_kernarg_size 104
  .amdhsa_user_sgpr_count 2
  .amdhsa_user_sgpr_kernarg_segment_ptr 1
  .amdhsa_system_sgpr_workgroup_id_x 1
  .amdhsa_float_denorm_mode_32 3
.end_amdhsa_kernel
"""

def vr(b, n):
    return f"v[{b}:{b+n-1}]"

STAMP = False
SV = 253
def stamp_init(a):
    if not STAMP: return
    a("s_mov_b32 s92, s26")
    a("s_mov_b32 s93, s27")
    a("s_mov_b32 s94, 256")
    a("s_mov_b32 s95, 0x00020000")
def stamp(a, idx, wg=0):
    if not STAMP: return
    lbl = f"stq{id(a)}_{len(a.lines)}"
    a(f"s_cmp_lg_u32 s2, {wg}")
    a(f"s_cbranch_scc1 {lbl}")
    a("s_memtime s[88:89]")
    a("s_waitcnt lgkmcnt(0)")
    a(f"v_mov_b32 v{SV+2}, s88")
    a(f"v_mov_b32 v{SV+1}, 0")
    a("v_cmp_eq_u32 vcc, 0, v0")
    a("s_and_saveexec_b64 s[90:91], vcc")
    a(f"buffer_store_dword v{SV+2}, v{SV+1}, s[92:95], 0 offen offset:{4*idx}")
    a("s_mov_b64 exec, s[90:91]")
    a.label(lbl)

def stamp_rt(a, idx, wg=0):
    if not STAMP: return
    lbl = f"str{id(a)}_{len(a.lines)}"
    a(f"s_cmp_lg_u32 s2, {wg}")
    a(f"s_cbranch_scc1 {lbl}")
    a("s_memrealtime s[88:89]")
    a("s_getreg_b32 s87, hwreg(HW_REG_XCC_ID)")
    a("s_waitcnt lgkmcnt(0)")
    a(f"v_mov_b32 v{SV+2}, s88")
    a(f"v_mov_b32 v{SV}, s87")
    a(f"v_add_u32 v{SV}, 100, v{SV}")
    a(f"v_mov_b32 v{SV+1}, 0")
    a("v_cmp_eq_u32 vcc, 0, v0")
    a("s_and_saveexec_b64 s[90:91], vcc")
    a(f"buffer_store_dword v{SV+2}, v{SV+1}, s[92:95], 0 offen offset:{4*idx}")
    a(f"buffer_store_dword v{SV}, v{SV+1}, s[92:95], 0 offen offset:{4*idx+4}")
    a("s_mov_b64 exec, s[90:91]")
    a.label(lbl)

WS_TRACE = 24 * MB
def trace_rt(a, slot, kidx):
    if not STAMP: return
    lbl = f"trc{id(a)}_{len(a.lines)}"
    a("s_memrealtime s[88:89]")
    a("s_lshl_b32 s87, s2, 4")
    a(f"s_add_u32 s87, s87, {WS_TRACE + kidx*65536 + slot*4}")
    a("s_waitcnt lgkmcnt(0)")
    a(f"v_mov_b32 v{SV+2}, s88")
    a(f"v_mov_b32 v{SV+1}, 0")
    a("v_cmp_eq_u32 vcc, 0, v0")
    a("s_and_saveexec_b64 s[90:91], vcc")
    a(f"s_cbranch_execz {lbl}")
    a(f"buffer_store_dword v{SV+2}, v{SV+1}, s[32:35], s87 offen")
    a.label(lbl)
    a("s_mov_b64 exec, s[90:91]")
```

```python
from common import *
import common
from prep import load_ptrs, unpack

KB = 0
KCS = 4160
UB = 16640
PBS = 9216
CONV_LDS = 36864

def bf16r_pair(a, pk, x0, x1, d0, d1):
    a(f"v_cvt_pk_bf16_f32 v{pk}, v{x0}, v{x1}")
    a(f"v_lshlrev_b32 v{d0}, 16, v{pk}")
    a(f"v_and_b32 v{d1}, 0xffff0000, v{pk}")

def gen_conv(a, name, xt_in, xt_out, st):
    kernel_begin(a, name)
    load_ptrs(a)
    a("s_cmp_ge_u32 s2, 512")
    a(f"s_cbranch_scc1 {name}_end")
    a("s_waitcnt lgkmcnt(0)")
    srd(a, 32, 28, WS_SIZE)
    stamp_init(a); stamp(a, 0); stamp_rt(a, 40); trace_rt(a, 0, common.KIDX)
    a(f"""
    v_lshlrev_b32 v1, 4, v0            ; 16 t
    v_lshlrev_b32 v2, 5, v0            ; 32 t
    s_lshl_b32 s3, s2, 12
    s_add_u32 s36, s3, {xt_in}
    s_add_u32 s37, s3, {xt_out}
    s_mul_i32 s38, s2, {KR_STRIDE}
    s_add_u32 s38, s38, {WS_KR}
    s_mov_b32 s39, {st}
    s_mov_b32 s40, {st + 8192}
    s_mov_b32 s41, {st + 16384}
    buffer_load_dwordx4 v[4:7], v1, s[32:35], s36 offen          ; x
    buffer_load_dwordx4 v[8:11], v1, s[32:35], s38 offen         ; K chunk
    buffer_load_dwordx2 v[12:13], v1, s[32:35], s38 offen offset:16
    buffer_load_dwordx4 v[16:19], v2, s[32:35], s39 offen        ; piv
    buffer_load_dwordx4 v[20:23], v2, s[32:35], s39 offen offset:16
    buffer_load_dwordx4 v[24:27], v2, s[32:35], s40 offen        ; s1
    buffer_load_dwordx4 v[28:31], v2, s[32:35], s40 offen offset:16
    buffer_load_dwordx4 v[32:35], v2, s[32:35], s41 offen        ; s2
    buffer_load_dwordx4 v[36:39], v2, s[32:35], s41 offen offset:16
    s_lshr_b32 s3, s2, 1
    s_lshl_b32 s3, s3, 2
    s_add_u32 s16, s16, s3
    s_addc_u32 s17, s17, 0
    s_load_dword s42, s[16:17], 0
    """)
    a(f"""
    v_mov_b32 v40, 0
    v_mov_b32 v41, 0
    v_mov_b32 v42, 0
    v_mov_b32 v43, 0
    v_cmp_gt_u32 vcc, 160, v0
    s_and_saveexec_b64 s[44:45], vcc
    ds_write_b128 v1, v[40:43] offset:{UB}
    s_mov_b64 exec, s[44:45]
    v_cmp_gt_u32 vcc, 4, v0
    s_and_saveexec_b64 s[44:45], vcc
    """)
    for s in range(4):
        a(f"ds_write_b128 v1, v[40:43] offset:{KB + KCS*s + 4096}")
    a("s_mov_b64 exec, s[44:45]")
    a(f"""
    v_and_b32 v44, 63, v0              ; lane
    v_lshrrev_b32 v45, 6, v0           ; w
    v_and_b32 v46, 31, v44             ; i / a
    v_lshrrev_b32 v47, 5, v44          ; g
    v_and_b32 v48, 3, v46
    v_sub_u32 v48, 3, v48              ; s = 3 - (i&3)
    v_mul_u32_u24 v48, {KCS}, v48
    v_lshrrev_b32 v49, 2, v46
    v_lshlrev_b32 v49, 3, v49          ; 2*4*(i>>2)
    v_sub_u32 v48, v48, v49
    v_lshl_add_u32 v48, v47, 4, v48    ; + 2*8g
    v_lshlrev_b32 v49, 9, v45          ; 2*32*8*w
    v_sub_u32 v48, v48, v49
    v_add_u32 v48, {KB + 2*(2044 - 32*39)}, v48     ; vA
    v_lshlrev_b32 v49, 3, v45
    v_sub_u32 v49, v46, v49            ; a - 8w
    v_add_u32 v49, 25, v49             ; 32 + a - 8w - 7
    v_mul_u32_u24 v49, 80, v49
    v_lshl_add_u32 v49, v47, 4, v49
    v_add_u32 v49, {UB}, v49           ; vB
    """)
    a("s_waitcnt vmcnt(6)")
    stamp(a, 1)
    a(f"""
    ds_write_b128 v1, v[8:11] offset:{KB}
    v_alignbyte_b32 v52, v9, v8, 2
    v_alignbyte_b32 v53, v10, v9, 2
    v_alignbyte_b32 v54, v11, v10, 2
    v_alignbyte_b32 v55, v12, v11, 2
    v_alignbyte_b32 v56, v13, v12, 2
    v_mov_b32 v60, v9
    v_mov_b32 v61, v10
    v_mov_b32 v62, v11
    v_mov_b32 v63, v12
    ds_write_b128 v1, v[52:55] offset:{KB + KCS}
    ds_write_b128 v1, v[60:63] offset:{KB + 2*KCS}
    v_mov_b32 v64, v53
    v_mov_b32 v65, v54
    v_mov_b32 v66, v55
    v_mov_b32 v67, v56
    ds_write_b128 v1, v[64:67] offset:{KB + 3*KCS}
    """)
    a("s_waitcnt vmcnt(0)")
    for e in range(8):
        a(f"v_mul_f32 v{24+e}, 0x3b000000, v{24+e}")
        a(f"v_mul_f32 v{32+e}, 0x3b000000, v{32+e}")
        a(f"v_add_f32 v{16+e}, v{16+e}, v{24+e}")
        a(f"v_fma_f32 v{32+e}, -v{24+e}, v{24+e}, v{32+e}")
        a(f"v_max_f32 v{32+e}, 0, v{32+e}")
    for e in range(0, 8, 2):
        bf16r_pair(a, 50, 16+e, 17+e, 16+e, 17+e)
        bf16r_pair(a, 51, 32+e, 33+e, 32+e, 33+e)
    for e in range(8):
        a(f"v_add_f32 v{32+e}, 0x3727c5ac, v{32+e}")
    for e in range(0, 8, 2):
        bf16r_pair(a, 51, 32+e, 33+e, 32+e, 33+e)
    for e in range(8):
        a(f"v_sqrt_f32 v{24+e}, v{32+e}")
    a("s_nop 0")
    for e in range(0, 8, 2):
        bf16r_pair(a, 51, 24+e, 25+e, 24+e, 25+e)
    for e in range(8):
        a(f"v_rcp_f32 v{32+e}, v{24+e}")
    for e in range(8):
        unpack(a, 68+e, 4, e)
    for e in range(8):
        a(f"v_sub_f32 v{76+e}, v{68+e}, v{16+e}")
    for e in range(0, 8, 2):
        bf16r_pair(a, 50, 76+e, 77+e, 76+e, 77+e)
    for e in range(8):
        a(f"v_mul_f32 v{84+e}, v{76+e}, v{32+e}")
    for e in range(8):
        a(f"v_fma_f32 v{76+e}, -v{84+e}, v{24+e}, v{76+e}")
    for e in range(8):
        a(f"v_fmac_f32 v{84+e}, v{76+e}, v{32+e}")
    for e in range(0, 8, 2):
        bf16r_pair(a, 92+e//2, 84+e, 85+e, 84+e, 85+e)
    a(f"""
    v_lshrrev_b32 v50, 2, v0
    v_mul_u32_u24 v50, 80, v50
    v_and_b32 v51, 3, v0
    v_lshl_add_u32 v50, v51, 4, v50
    ds_write_b128 v50, v[92:95] offset:{UB + 2560}
    """)
    for r in range(32):
        a(f"v_mov_b32 v{96+r}, 0")
    stamp(a, 2)
    a("s_waitcnt lgkmcnt(0)")
    a("s_barrier")
    stamp(a, 3)
    steps = [(cc, h) for cc in range(8) for h in range(2)]
    def rd(n, which):
        cc, h = steps[n]
        b = 128 + 16*(n & 1)
        oa = 2*(32*(7-cc) + 16*h)
        ob = 80*(7-cc) + 32*h
        if which == 0:
            a(f"ds_read_b64 v[{b}:{b+1}], v48 offset:{oa + 2048}")
            a(f"ds_read_b64 v[{b+2}:{b+3}], v48 offset:{oa + 2048 + 8}")
            a(f"ds_read_b128 v[{b+12}:{b+15}], v49 offset:{ob + 2560}")
        elif which == 1:
            a(f"ds_read_b128 v[{b+8}:{b+11}], v49 offset:{ob}")
        else:
            a(f"ds_read_b64 v[{b+4}:{b+5}], v48 offset:{oa}")
            a(f"ds_read_b64 v[{b+6}:{b+7}], v48 offset:{oa + 8}")
    rd(0, 0); rd(0, 1); rd(0, 2)
    for n in range(16):
        last = n == 15
        b = 128 + 16*(n & 1)
        a("s_waitcnt lgkmcnt(3)")
        a(f"v_mfma_f32_32x32x16_bf16 v[112:127], v[{b}:{b+3}], v[{b+12}:{b+15}], v[112:127]")
        if not last: rd(n+1, 0)
        a(f"s_waitcnt lgkmcnt({2 if last else 5})")
        a(f"v_mfma_f32_32x32x16_bf16 v[96:111], v[{b}:{b+3}], v[{b+8}:{b+11}], v[96:111]")
        if not last: rd(n+1, 1)
        a(f"s_waitcnt lgkmcnt({0 if last else 4})")
        a(f"v_mfma_f32_32x32x16_bf16 v[112:127], v[{b+4}:{b+7}], v[{b+8}:{b+11}], v[112:127]")
        if not last: rd(n+1, 2)
    a("s_barrier")
    stamp(a, 4)
    a(f"""
    v_mul_u32_u24 v50, {PBS}, v45
    v_mul_u32_u24 v51, 144, v46
    v_add_u32 v50, v50, v51
    v_lshl_add_u32 v50, v47, 4, v50
    s_nop 7
    s_nop 3
    """)
    for T in range(2):
        for q in range(4):
            a(f"ds_write_b128 v50, v[{96+16*T+4*q}:{99+16*T+4*q}] offset:{144*32*T + 32*q}")
    a(f"""
    v_lshrrev_b32 v50, 2, v0
    v_mul_u32_u24 v50, 144, v50
    v_and_b32 v51, 3, v0
    v_lshl_add_u32 v50, v51, 5, v50
    s_waitcnt lgkmcnt(0)
    s_barrier
    """)
    for w in range(4):
        a(f"ds_read_b128 v[{128+8*w}:{131+8*w}], v50 offset:{PBS*w}")
        a(f"ds_read_b128 v[{132+8*w}:{135+8*w}], v50 offset:{PBS*w + 16}")
    a("""
    s_and_b32 s43, s2, 1
    s_lshl_b32 s43, s43, 4
    s_lshr_b32 s42, s42, s43
    s_lshl_b32 s42, s42, 16
    """)
    for e in range(8):
        a(f"v_mul_f32 v{76+e}, s42, v{84+e}")
    for e in range(0, 8, 2):
        bf16r_pair(a, 50, 76+e, 77+e, 76+e, 77+e)
    a("s_waitcnt lgkmcnt(0)")
    for e in range(8):
        a(f"v_add_f32 v{128+e}, v{128+e}, v{136+e}")
        a(f"v_add_f32 v{144+e}, v{144+e}, v{152+e}")
    for e in range(8):
        a(f"v_add_f32 v{128+e}, v{128+e}, v{144+e}")
    for e in range(0, 8, 2):
        bf16r_pair(a, 50, 128+e, 129+e, 128+e, 129+e)
    for e in range(8):
        a(f"v_add_f32 v{128+e}, v{128+e}, v{76+e}")
    for e in range(0, 8, 2):
        bf16r_pair(a, 50, 128+e, 129+e, 128+e, 129+e)
    for e in range(8):
        a(f"v_add_f32 v{128+e}, v{128+e}, v{68+e}")
    for e in range(0, 8, 2):
        a(f"v_cvt_pk_bf16_f32 v{136+e//2}, v{128+e}, v{129+e}")
    a("buffer_store_dwordx4 v[136:139], v1, s[32:35], s37 offen")
    stamp(a, 5)
    if common.STAMP:
        a("s_waitcnt vmcnt(0)")
    stamp(a, 6); stamp_rt(a, 42); trace_rt(a, 1, common.KIDX)
    a.label(f"{name}_end")
    a("s_endpgm")
    return 160
```

```python
from common import *
import common, os
from prep import load_ptrs
from conv import bf16r_pair

G1_LDS = 131072 + 2048
SB = 131072

def gen_gemm1(a, name, xt_in, write_piv):
    kernel_begin(a, name)
    load_ptrs(a)
    a("s_cmp_ge_u32 s2, 224")
    a(f"s_cbranch_scc1 {name}_end")
    a("""
    v_and_b32 v1, 63, v0          ; lane
    v_lshrrev_b32 v2, 6, v0       ; wave
    v_lshrrev_b32 v3, 4, v1       ; q = L>>4
    v_and_b32 v4, 15, v1          ; slot
    v_readfirstlane_b32 s42, v2
    v_and_b32 v2, 3, v2
    s_and_b32 s3, s2, 6
    s_lshl_b32 s3, s3, 1          ; 4*(xcd>>1)
    s_lshr_b32 s40, s2, 3
    s_and_b32 s40, s40, 3
    s_add_u32 s40, s3, s40        ; lt
    s_and_b32 s3, s2, 1
    s_mul_i32 s3, s3, 7
    s_lshr_b32 s41, s2, 5
    s_add_u32 s41, s41, s3        ; ft
    v_lshrrev_b32 v12, 2, v1
    v_and_b32 v12, 3, v12         ; r
    v_and_b32 v13, 3, v1          ; c
    v_lshrrev_b32 v14, 1, v3      ; q>>1
    v_lshl_add_u32 v14, v14, 3, v12
    v_lshlrev_b32 v14, 8, v14
    v_and_b32 v15, 1, v3
    v_lshl_add_u32 v14, v15, 5, v14
    v_lshrrev_b32 v15, 1, v13
    v_lshl_add_u32 v14, v15, 4, v14
    v_and_b32 v15, 1, v13
    v_lshl_add_u32 v14, v15, 3, v14
    s_waitcnt lgkmcnt(0)
    """)
    srd(a, 32, 28, WS_SIZE)
    stamp_init(a); stamp(a, 0); stamp_rt(a, 40); trace_rt(a, 0, common.KIDX)
    a("s_cmp_lt_u32 s42, 4")
    a(f"s_cbranch_scc1 {name}_compute")
    a("s_cmp_ge_u32 s42, 8")
    a(f"s_cbranch_scc1 {name}_stats")
    srd(a, 36, 20, D*DFF*2)
    a(f"""
    s_and_b32 s42, s42, 3
    v_lshlrev_b32 v5, 2, v3
    v_xor_b32 v4, v4, v5
    v_lshl_add_u32 v5, v2, 4, v3  ; row = 16w + (L>>4)
    v_mul_u32_u24 v6, 3584, v5
    v_lshl_add_u32 v6, v4, 4, v6  ; voffset w1
    v_lshlrev_b32 v7, 12, v5
    v_lshl_add_u32 v7, v4, 4, v7
    s_lshl_b32 s43, s41, 8
    s_lshl_b32 s44, s40, 8
    s_add_u32 s44, s44, {xt_in}
    s_lshl_b32 s45, s42, 12
    """)
    def dma(stage):
        buf = stage & 3
        for j in range(4):
            a(f"s_add_u32 s46, s44, {(64*stage + 4*j)*4096}")
            a(f"s_add_u32 m0, s45, {buf*32768 + 16384 + j*1024}")
            a("s_nop 0")
            a("buffer_load_dwordx4 v7, s[32:35], s46 offen lds")
        for j in range(4):
            a(f"s_add_u32 s46, s43, {(64*stage + 4*j)*3584}")
            a(f"s_add_u32 m0, s45, {buf*32768 + j*1024}")
            a("s_nop 0")
            a("buffer_load_dwordx4 v6, s[36:39], s46 offen lds")
    dma(0)
    dma(1)
    a("s_waitcnt vmcnt(8)")
    a("s_barrier")
    dma(2)
    dma(3)
    for st in range(1, 8):
        n = 8 * (min(st + 2, 7) - st)
        a(f"s_waitcnt vmcnt({n})")
        a("s_barrier")
        if st + 3 < 8:
            dma(st + 3)
    a("s_endpgm")
    a.label(f"{name}_stats")
    a(f"""
    v_and_b32 v36, 31, v1
    v_lshl_add_u32 v36, v2, 5, v36
    v_lshlrev_b32 v37, 2, v36
    s_lshl_b32 s47, s41, 9
    s_add_u32 s47, s47, {WS_CS}
    buffer_load_dword v30, v37, s[32:35], s47 offen
    v_add_u32 v31, {SB + 1024}, v37
    """)
    a("""
    v_xor_b32 v15, v2, v12
    v_lshl_add_u32 v18, v15, 6, v14
    v_add_u32 v18, 0x4000, v18
    v_add_u32 v22, 0x10000, v18
    v_mov_b32 v28, 0x3f803f80
    """)
    for k in range(8):
        a(f"v_mov_b32 v{32+k}, 0")
    for st in range(8):
        a("s_barrier")
        buf = st & 3
        ad = 22 if buf >= 2 else 18
        for ks in range(4):
            off = (buf & 1)*32768 + ks*4096
            a(f"ds_read_b64_tr_b16 v[{64+4*ks}:{65+4*ks}], v{ad} offset:{off}")
            a(f"ds_read_b64_tr_b16 v[{66+4*ks}:{67+4*ks}], v{ad} offset:{off+1024}")
        for ks in range(4):
            a(f"s_waitcnt lgkmcnt({6-2*ks})")
            for k in range(4 if not os.environ.get("NOSTATS") else 0):
                t = 80 + 2*(k & 1)
                a(f"v_lshlrev_b32 v{t}, 16, v{64+4*ks+k}")
                a(f"v_and_b32 v{t+1}, 0xffff0000, v{64+4*ks+k}")
                a(f"v_add_f32 v{32+2*(k&1)}, v{32+2*(k&1)}, v{t}")
                a(f"v_add_f32 v{33+2*(k&1)}, v{33+2*(k&1)}, v{t+1}")
                a(f"v_fmac_f32 v{36+2*(k&1)}, v{t}, v{t}")
                a(f"v_fmac_f32 v{37+2*(k&1)}, v{t+1}, v{t+1}")
    a("""
    s_nop 3
    v_add_f32 v32, v32, v33
    v_add_f32 v34, v34, v35
    v_add_f32 v36, v36, v37
    v_add_f32 v38, v38, v39
    v_add_f32 v24, v32, v34
    v_add_f32 v26, v36, v38
    v_mov_b32 v32, v24
    v_mov_b32 v33, v26
    s_nop 1
    v_permlane32_swap_b32 v32, v24
    v_permlane32_swap_b32 v33, v26
    s_nop 1
    v_add_f32 v24, v24, v32
    v_add_f32 v26, v26, v33
    v_mul_f32 v24, 0x3b000000, v24       ; mean
    v_mul_f32 v26, 0x3b000000, v26
    v_fma_f32 v26, -v24, v24, v26
    v_max_f32 v26, 0, v26
    v_and_b32 v36, 31, v1
    v_lshl_add_u32 v36, v2, 5, v36
    """)
    if write_piv:
        a(f"""
        s_cmp_lg_u32 s41, 0
        s_cbranch_scc1 {name}_nopiv
        v_lshlrev_b32 v37, 2, v36
        s_lshl_b32 s48, s40, 9
        s_add_u32 s48, s48, {WS_ST3}
        s_add_u32 s49, s48, 8192
        s_add_u32 s50, s48, 16384
        v_mov_b32 v38, 0
        v_cmp_gt_u32 vcc, 32, v1
        s_and_saveexec_b64 s[52:53], vcc
        buffer_store_dword v24, v37, s[32:35], s48 offen
        buffer_store_dword v38, v37, s[32:35], s49 offen
        buffer_store_dword v38, v37, s[32:35], s50 offen
        s_mov_b64 exec, s[52:53]
        """)
        a.label(f"{name}_nopiv")
    bf16r_pair(a, 39, 24, 26, 40, 42)
    a("v_add_f32 v42, 0x3727c5ac, v42")
    bf16r_pair(a, 39, 42, 42, 42, 43)
    a("v_sqrt_f32 v42, v42")
    a("s_nop 0")
    bf16r_pair(a, 39, 42, 42, 42, 43)
    a("v_rcp_f32 v41, v42")
    a(f"""
    v_lshlrev_b32 v37, 3, v36
    v_add_u32 v37, {SB}, v37
    ds_write_b64 v37, v[40:41]
    s_waitcnt vmcnt(0)
    ds_write_b32 v31, v30
    s_waitcnt lgkmcnt(0)
    s_barrier
    s_endpgm
    """)
    a.label(f"{name}_compute")
    a(f"""
    v_and_b32 v8, 1, v2           ; wf
    v_lshrrev_b32 v9, 1, v2       ; wl
    v_lshrrev_b32 v10, 5, v1      ; g
    """)
    for t in range(2):
        a(f"""
        v_lshl_add_u32 v15, v8, 1, {t}
        v_xor_b32 v15, v15, v12
        v_lshl_add_u32 v{16+t}, v15, 6, v14
        v_add_u32 v{20+t}, 0x10000, v{16+t}
        v_lshl_add_u32 v15, v9, 1, {t}
        v_xor_b32 v15, v15, v12
        v_lshl_add_u32 v{18+t}, v15, 6, v14
        v_add_u32 v{18+t}, 0x4000, v{18+t}
        v_add_u32 v{22+t}, 0x10000, v{18+t}
        """)
    ACC = 32; FR = 96
    for r in range(64):
        a(f"v_mov_b32 v{ACC+r}, 0")
    a(f"""
    v_and_b32 v24, 31, v1
    v_lshl_add_u32 v24, v9, 6, v24     ; 64 wl + (L&31)
    v_lshlrev_b32 v25, 3, v24
    v_add_u32 v25, {SB}, v25
    v_mul_u32_u24 v26, 3584, v24
    v_lshl_add_u32 v26, v8, 7, v26
    v_lshl_add_u32 v26, v10, 4, v26
    v_add_u32 v27, {32*3584}, v26
    v_lshlrev_b32 v28, 8, v8
    v_lshl_add_u32 v28, v10, 4, v28
    v_add_u32 v28, {SB + 1024}, v28
    v_mov_b32 v29, 0
    s_mul_i32 s48, s40, {128*3584}
    s_lshl_b32 s49, s41, 8
    s_add_u32 s48, s48, s49
    s_add_u32 s48, s48, {WS_H}
    """)
    def rd(n, which, t):
        stage, ks, p = n // 4, n % 4, n % 3
        buf = stage & 3
        hi = buf >= 2
        off = (buf & 1)*32768 + ks*4096
        b = FR + 16*p + (8 if which == 'B' else 0) + 4*t
        ad = ((22 if hi else 18) if which == 'B' else (20 if hi else 16)) + t
        a(f"ds_read_b64_tr_b16 v[{b}:{b+1}], v{ad} offset:{off}")
        a(f"ds_read_b64_tr_b16 v[{b+2}:{b+3}], v{ad} offset:{off+1024}")
    def mfma(p, tf, tl):
        b = FR + 16*p
        acc = ACC + 32*tf + 16*tl
        a(f"v_mfma_f32_32x32x16_bf16 v[{acc}:{acc+15}], v[{b+4*tf}:{b+4*tf+3}], v[{b+8+4*tl}:{b+8+4*tl+3}], v[{acc}:{acc+15}]")
    a("s_barrier")
    stamp(a, 1)
    for n in range(2):
        rd(n, 'A', 0); rd(n, 'B', 0); rd(n, 'A', 1); rd(n, 'B', 1)
    for n in range(32):
        p = n % 3
        more = n + 2 < 32
        newstage = more and ((n + 2) % 4 == 0)
        if newstage or n == 31:
            a("s_waitcnt lgkmcnt(0)")
        else:
            a("s_waitcnt lgkmcnt(8)")
        mfma(p, 0, 0)
        if newstage:
            a("s_barrier")
            stamp(a, 1 + (n+2)//4)
        if more: rd(n+2, 'A', 0)
        mfma(p, 1, 0)
        if more: rd(n+2, 'B', 0)
        mfma(p, 0, 1)
        if more: rd(n+2, 'A', 1)
        mfma(p, 1, 1)
        if more: rd(n+2, 'B', 1)
    stamp(a, 9)
    a("s_barrier")
    a("ds_read_b64 v[144:145], v25")
    a("ds_read_b64 v[148:149], v25 offset:256")
    for tf in range(2):
        for qd in range(4):
            a(f"ds_read_b128 v[{FR+16*tf+4*qd}:{FR+3+16*tf+4*qd}], v28 offset:{128*tf + 32*qd}")
    a("""
    s_waitcnt lgkmcnt(8)
    v_mov_b32 v146, v145
    v_mov_b32 v147, v145
    v_mov_b32 v145, v144
    v_mov_b32 v150, v149
    v_mov_b32 v151, v149
    v_mov_b32 v149, v148
    s_waitcnt lgkmcnt(0)
    """)
    mp = [144, 148]; rp = [146, 150]
    for tf in range(2):
        for tl in range(2):
            acc = ACC + 32*tf + 16*tl
            ob = 128 + 8*tl
            for r in range(0, 16, 2):
                cs = FR + 16*tf + r
                a(f"v_pk_fma_f32 v[{acc+r}:{acc+r+1}], v[{mp[tl]}:{mp[tl]+1}], v[{cs}:{cs+1}], v[{acc+r}:{acc+r+1}] neg_lo:[1,0,0] neg_hi:[1,0,0]")
            for r in range(0, 16, 2):
                a(f"v_pk_mul_f32 v[{acc+r}:{acc+r+1}], v[{acc+r}:{acc+r+1}], v[{rp[tl]}:{rp[tl]+1}]")
            for r in range(0, 16, 2):
                a(f"v_cvt_pk_bf16_f32 v{ob+r//2}, v{acc+r}, v{acc+r+1}")
            for r in range(8):
                a(f"v_pk_max_i16 v{ob+r}, v{ob+r}, v29")
            a("s_nop 1")
            for qp in range(2):
                a(f"v_permlane32_swap_b32 v{ob+4*qp}, v{ob+2+4*qp}")
                a(f"v_permlane32_swap_b32 v{ob+1+4*qp}, v{ob+3+4*qp}")
            for qp in range(2):
                a(f"buffer_store_dwordx4 v[{ob+4*qp}:{ob+3+4*qp}], v{26+tl}, s[32:35], s48 offen offset:{64*tf + 32*qp}")
    stamp(a, 10)
    if common.STAMP:
        a("s_waitcnt vmcnt(0)")
    stamp(a, 11); stamp_rt(a, 42); trace_rt(a, 1, common.KIDX)
    a.label(f"{name}_end")
    a("s_endpgm")
    return 160
```

```python
from common import *
import common, os
from prep import load_ptrs
from conv import bf16r_pair

G2ST = os.environ.get("G2ST", " sc0 sc1")
G2_LDS = 131072 + 8192
RB = 131072

def gen_gemm2(a, name, xt_res, xt_out, final):
    NST = 14
    kernel_begin(a, name)
    load_ptrs(a)
    a("s_cmp_ge_u32 s2, 256")
    a(f"s_cbranch_scc1 {name}_end")
    a(f"""
    v_and_b32 v1, 63, v0          ; lane
    v_lshrrev_b32 v2, 6, v0       ; wave
    v_lshrrev_b32 v3, 4, v1       ; q = L>>4
    v_lshrrev_b32 v4, 3, v1
    v_readfirstlane_b32 s42, v2
    v_and_b32 v2, 3, v2
    s_and_b32 s3, s2, 7
    s_lshl_b32 s3, s3, 2
    s_lshr_b32 s40, s2, 3
    s_and_b32 s41, s40, 3
    s_add_u32 s40, s3, s41        ; lt (0..31)
    s_lshr_b32 s41, s2, 5         ; dt (0..7)
    s_lshl_b32 s47, s41, 18       ; dt*64*4096
    s_lshl_b32 s48, s40, 7        ; lt*128
    s_add_u32 s47, s47, s48
    s_waitcnt lgkmcnt(0)
    """)
    srd(a, 32, 28, WS_SIZE)
    stamp_init(a); stamp(a, 0); stamp_rt(a, 40); trace_rt(a, 0, common.KIDX)
    a("s_cmp_lt_u32 s42, 4")
    a(f"s_cbranch_scc1 {name}_compute")
    srd(a, 36, 22, D*DFF*2)
    a(f"""
    s_and_b32 s42, s42, 3
    v_and_b32 v5, 7, v1
    v_lshrrev_b32 v6, 1, v4
    v_and_b32 v6, 1, v6
    v_lshlrev_b32 v6, 2, v6
    v_xor_b32 v5, v5, v6
    v_lshl_add_u32 v6, v2, 5, v4  ; row
    v_lshlrev_b32 v6, 10, v6      ; *1024
    v_lshl_add_u32 v6, v5, 4, v6  ; voffset w2
    v_lshl_add_u32 v7, v2, 2, v3  ; 4w + q
    v_and_b32 v5, 15, v1
    v_xor_b32 v5, v5, v7
    v_mul_u32_u24 v7, 3584, v7
    v_lshl_add_u32 v7, v5, 4, v7  ; voffset h
    s_lshl_b32 s43, s41, 7
    s_mul_i32 s44, s40, {64*3584}
    s_add_u32 s44, s44, {WS_H}
    s_lshl_b32 s45, s42, 12
    """)
    if os.environ.get("SAMETILE"):
        a("s_mov_b32 s43, 0")
        a(f"s_mov_b32 s44, {WS_H}")
    a(f"""
    s_lshl_b32 s46, s42, 10
    """)
    def dma(stage):
        buf = stage & 3
        for j in range(4):
            a(f"s_add_u32 s50, s44, {16*j*3584 + 256*stage}")
            a(f"s_add_u32 m0, s46, {buf*32768 + 16384 + j*4096}")
            a("s_nop 0")
            a("buffer_load_dwordx4 v7, s[32:35], s50 offen lds")
        for j in range(4):
            a(f"s_add_u32 s50, s43, {(128*stage + 8*j)*1024}")
            a(f"s_add_u32 m0, s45, {buf*32768 + j*1024}")
            a("s_nop 0")
            a("buffer_load_dwordx4 v6, s[36:39], s50 offen lds")
    for st in range(3):
        dma(st)
    a(f"""
    v_lshl_add_u32 v8, v2, 4, v4
    v_lshlrev_b32 v8, 12, v8
    v_and_b32 v5, 7, v1
    v_lshl_add_u32 v8, v5, 4, v8
    s_add_u32 s48, s47, {xt_res}
    s_lshl_b32 s49, s42, 11       ; 16 w rows * 128
    s_add_u32 m0, s49, {RB}
    s_nop 0
    buffer_load_dwordx4 v8, s[32:35], s48 offen lds
    s_add_u32 s48, s48, {8*4096}
    s_add_u32 m0, s49, {RB + 1024}
    s_nop 0
    buffer_load_dwordx4 v8, s[32:35], s48 offen lds
    """)
    for st in range(NST):
        later = min(st + 2, NST - 1) - st
        n = 8*later + (2 if st <= 2 else 0)
        a(f"s_waitcnt vmcnt({n})")
        a("s_barrier")
        if st + 3 < NST:
            dma(st + 3)
    a("s_endpgm")
    a.label(f"{name}_compute")
    if final:
        srd(a, 56, 24, L*D*2)
    a("""
    v_and_b32 v9, 1, v2           ; td
    v_lshrrev_b32 v10, 1, v2      ; tl
    v_lshrrev_b32 v11, 5, v1      ; g
    v_lshrrev_b32 v12, 2, v1
    v_and_b32 v12, 3, v12         ; r
    v_and_b32 v13, 3, v1          ; c
    v_lshrrev_b32 v14, 1, v3
    v_lshl_add_u32 v14, v14, 3, v12
    v_lshlrev_b32 v14, 7, v14
    v_lshrrev_b32 v15, 1, v12
    v_xor_b32 v15, v15, v9
    v_lshl_add_u32 v14, v15, 6, v14
    v_and_b32 v15, 1, v3
    v_lshl_add_u32 v14, v15, 5, v14
    v_lshrrev_b32 v15, 1, v13
    v_lshl_add_u32 v14, v15, 4, v14
    v_and_b32 v15, 1, v13
    v_lshl_add_u32 v16, v15, 3, v14      ; A low
    v_add_u32 v17, 0x10000, v16          ; A high
    v_and_b32 v18, 31, v1                ; n
    v_lshl_add_u32 v14, v10, 5, v18
    v_lshlrev_b32 v14, 8, v14
    v_and_b32 v15, 15, v18
    v_xor_b32 v15, v15, v11
    v_lshl_add_u32 v14, v15, 4, v14
    v_add_u32 v14, 0x4000, v14
    """)
    for ks in range(8):
        a(f"v_xor_b32 v{20+ks}, {32*ks}, v14")
        a(f"v_add_u32 v{28+ks}, 0x10000, v{20+ks}")
    for r in range(16):
        a(f"v_mov_b32 v{64+r}, 0")
    if not final:
        a(f"""
        v_lshl_add_u32 v19, v10, 5, v18
        v_lshlrev_b32 v19, 2, v19
        s_lshl_b32 s51, s40, 8
        s_add_u32 s51, s51, {WS_ST3}
        buffer_load_dword v40, v19, s[32:35], s51 offen
        """)
    extra = 0 if final else 1
    def frag_reads(stage, ks, p):
        buf = stage & 3
        hi = buf >= 2
        b = 96 + 8*p
        off = (buf & 1)*32768
        ad = 17 if hi else 16
        a(f"ds_read_b64_tr_b16 v[{b}:{b+1}], v{ad} offset:{off + ks*2048}")
        a(f"ds_read_b64_tr_b16 v[{b+2}:{b+3}], v{ad} offset:{off + ks*2048 + 512}")
        bd = (28 if hi else 20) + ks
        a(f"ds_read_b128 v[{b+4}:{b+7}], v{bd} offset:{off}")
    NP = 4
    for st in range(NST):
        a("s_barrier")
        stamp(a, 1+st)
        if os.environ.get("NOCOMP"): continue
        frag_reads(st, 0, 0)
        frag_reads(st, 1, 1)
        for ks in range(8):
            if ks + 2 < 8:
                frag_reads(st, ks+2, (ks+2) % NP)
                a("s_waitcnt lgkmcnt(6)")
            elif ks + 1 < 8:
                a("s_waitcnt lgkmcnt(3)")
            else:
                a("s_waitcnt lgkmcnt(0)")
            b = 96 + 8*(ks % NP)
            a(f"v_mfma_f32_32x32x16_bf16 v[64:79], v[{b}:{b+3}], v[{b+4}:{b+7}], v[64:79]")
    stamp(a, 15)
    a(f"""
    v_lshrrev_b32 v14, 1, v3
    v_lshl_add_u32 v14, v14, 2, v12
    v_lshl_add_u32 v14, v9, 5, v14
    v_lshlrev_b32 v14, 7, v14
    v_lshl_add_u32 v14, v10, 6, v14
    v_and_b32 v15, 1, v3
    v_lshl_add_u32 v14, v15, 5, v14
    v_lshl_add_u32 v14, v13, 3, v14
    v_add_u32 v14, {RB}, v14
    """)
    for qd in range(4):
        a(f"ds_read_b64_tr_b16 v[{80+2*qd}:{81+2*qd}], v14 offset:{1024*qd}")
    a("s_nop 7")
    for r in range(0, 16, 2):
        bf16r_pair(a, 41, 64+r, 65+r, 64+r, 65+r)
    a("s_waitcnt vmcnt(0) lgkmcnt(0)")
    for r in range(16):
        if r % 2 == 0:
            a(f"v_lshlrev_b32 v41, 16, v{80+r//2}")
        else:
            a(f"v_and_b32 v41, 0xffff0000, v{80+r//2}")
        a(f"v_add_f32 v{64+r}, v{64+r}, v41")
    for r in range(0, 16, 2):
        a(f"v_cvt_pk_bf16_f32 v{88+r//2}, v{64+r}, v{65+r}")
    if final:
        a("s_nop 1")
        for qp in range(2):
            a(f"v_permlane32_swap_b32 v{88+4*qp}, v{90+4*qp}")
            a(f"v_permlane32_swap_b32 v{89+4*qp}, v{91+4*qp}")
        a(f"""
        v_lshl_add_u32 v14, v10, 5, v18
        v_lshlrev_b32 v14, 10, v14
        v_lshl_add_u32 v14, v9, 6, v14
        v_lshl_add_u32 v14, v11, 4, v14
        s_lshl_b32 s50, s40, 16
        s_lshl_b32 s51, s41, 7
        s_add_u32 s50, s50, s51
        buffer_store_dwordx4 v[88:91], v14, s[56:59], s50 offen
        buffer_store_dwordx4 v[92:95], v14, s[56:59], s50 offen offset:32
        """)
    else:
        a("v_mov_b32 v42, 0")
        a("v_mov_b32 v43, 0")
        a(f"""
        v_lshl_add_u32 v14, v9, 3, v11       ; 8 td + g
        v_lshlrev_b32 v14, 9, v14            ; (32 td + 4 g) * 128
        v_lshl_add_u32 v15, v10, 5, v18
        v_lshl_add_u32 v14, v15, 1, v14
        v_add_u32 v14, {RB}, v14
        """)
        for r in range(16):
            qd, e = r // 4, r % 4
            pk = 88 + r//2
            if r % 2 == 0:
                a(f"v_lshlrev_b32 v41, 16, v{pk}")
                a(f"ds_write_b16 v14, v{pk} offset:{(8*qd + e)*128}")
            else:
                a(f"v_and_b32 v41, 0xffff0000, v{pk}")
                a(f"ds_write_b16_d16_hi v14, v{pk} offset:{(8*qd + e)*128}")
            a("v_sub_f32 v41, v41, v40")
            a("v_add_f32 v42, v42, v41")
            a("v_fmac_f32 v43, v41, v41")
        a("""
        s_nop 1
        v_permlane32_swap_b32 v42, v43
        s_nop 1
        v_add_f32 v42, v42, v43
        """)
        a(f"""
        v_lshl_add_u32 v15, v10, 5, v18
        v_lshlrev_b32 v15, 2, v15
        v_lshl_add_u32 v15, v11, 13, v15     ; + g*8192
        s_lshl_b32 s51, s40, 8
        s_add_u32 s51, s51, {WS_ST3 + 8192}
        buffer_atomic_add_f32 v42, v15, s[32:35], s51 offen
        s_waitcnt lgkmcnt(0)
        s_barrier
        v_lshlrev_b32 v14, 5, v0
        v_add_u32 v14, {RB}, v14
        ds_read_b128 v[96:99], v14
        ds_read_b128 v[100:103], v14 offset:16
        v_lshrrev_b32 v15, 2, v0
        v_lshlrev_b32 v15, 12, v15
        v_and_b32 v14, 3, v0
        v_lshl_add_u32 v15, v14, 5, v15
        s_add_u32 s48, s47, {xt_out}
        s_waitcnt lgkmcnt(0)
        buffer_store_dwordx4 v[96:99], v15, s[32:35], s48 offen{G2ST}
        buffer_store_dwordx4 v[100:103], v15, s[32:35], s48 offen offset:16{G2ST}
        """)
    stamp(a, 16)
    if common.STAMP:
        a("s_waitcnt vmcnt(0)")
    stamp(a, 17); stamp_rt(a, 42); trace_rt(a, 1, common.KIDX)
    a.label(f"{name}_end")
    a("s_endpgm")
    return 128
```

```python
from common import *

LOG2E = "0x3fb8aa3b"
INV2PI = "0x3e22f983"

def load_ptrs(a):
    a("s_load_dwordx16 s[4:19], s[0:1], 0")
    a("s_load_dwordx8 s[20:27], s[0:1], 64")
    a("s_load_dwordx2 s[28:29], s[0:1], 96")

def unpack(a, dst, base, e):
    if e % 2 == 0:
        a(f"v_lshlrev_b32 v{dst}, 16, v{base + e//2}")
    else:
        a(f"v_and_b32 v{dst}, 0xffff0000, v{base + e//2}")

def gen_prep(a, name="prep_kernel"):
    kernel_begin(a, name)
    load_ptrs(a)
    a("s_cmp_ge_u32 s2, 604")
    a(f"s_cbranch_scc1 {name}_end")
    a("s_waitcnt lgkmcnt(0)")
    srd(a, 32, 28, WS_SIZE)
    stamp_init(a); stamp(a, 0); stamp_rt(a, 40); trace_rt(a, 0, 0)
    a("s_cmp_ge_u32 s2, 576")
    a(f"s_cbranch_scc1 {name}_colsum")
    a("s_cmp_ge_u32 s2, 512")
    a(f"s_cbranch_scc1 {name}_ln")
    srd(a, 36, 6, 131072)
    srd(a, 40, 8, 131072)
    srd(a, 44, 10, 131072)
    srd(a, 48, 12, 131072)
    a("""
    v_and_b32 v1, 63, v0
    v_and_b32 v2, 15, v0          ; i
    v_lshrrev_b32 v3, 4, v1       ; kq
    v_lshrrev_b32 v4, 6, v0       ; w
    v_lshlrev_b32 v5, 6, v4       ; w*64 bytes
    v_lshl_add_u32 v5, v3, 4, v5  ; + kq*16
    s_lshl_b32 s3, s2, 8          ; d*256 bytes
    buffer_load_dwordx4 v[8:11], v5, s[36:39], s3 offen
    buffer_load_dwordx4 v[12:15], v5, s[40:43], s3 offen
    buffer_load_dwordx4 v[16:19], v5, s[44:47], s3 offen
    buffer_load_dwordx4 v[20:23], v5, s[48:51], s3 offen
    s_lshr_b32 s3, s2, 1
    s_lshl_b32 s3, s3, 2
    s_add_u32 s14, s14, s3
    s_addc_u32 s15, s15, 0
    s_load_dword s60, s[14:15], 0
    """)
    a("""
    v_lshlrev_b32 v6, 3, v2
    v_cvt_f32_u32 v24, v6
    v_lshrrev_b32 v6, 3, v2
    v_lshlrev_b32 v6, 7, v6
    v_and_b32 v7, 7, v2
    v_add_u32 v6, v6, v7
    v_cvt_f32_u32 v25, v6
    v_cmp_gt_u32 vcc, 8, v2       ; i < 8
    v_lshrrev_b32 v6, 2, v2
    v_lshlrev_b32 v6, 7, v6
    v_and_b32 v7, 3, v2
    v_lshl_add_u32 v6, v7, 1, v6
    v_add_u32 v6, 256, v6         ; case i<8
    v_and_b32 v7, 7, v2           ; x = i-8 (when i>=8)
    v_lshrrev_b32 v28, 1, v7
    v_lshlrev_b32 v28, 7, v28
    v_and_b32 v7, 1, v7
    v_lshl_add_u32 v28, v7, 2, v28
    v_add_u32 v28, 512, v28
    v_cndmask_b32 v6, v28, v6, vcc
    v_cvt_f32_u32 v26, v6
    v_lshlrev_b32 v6, 7, v2
    v_add_u32 v6, 1024, v6
    v_mov_b32 v7, 2048
    v_cndmask_b32 v6, v7, v6, vcc
    v_cvt_f32_u32 v27, v6
    """)
    a("s_waitcnt lgkmcnt(0)")
    a("""
    s_and_b32 s61, s2, 1
    s_lshl_b32 s61, s61, 4
    s_lshr_b32 s60, s60, s61
    s_lshl_b32 s60, s60, 16
    v_mov_b32 v6, s60
    v_mul_f32 v6, %s, v6
    v_exp_f32 v6, v6
    s_nop 0
    v_cvt_pk_bf16_f32 v6, v6, v6
    v_lshlrev_b32 v29, 16, v6     ; v29 = dt
    """ % LOG2E)
    for r in range(12):
        a(f"v_mov_b32 v{100+r}, 0")
    a("s_waitcnt vmcnt(0)")
    stamp(a, 1)
    for s in range(8):
        unpack(a, 64, 8, s)
        unpack(a, 65, 12, s)
        unpack(a, 66, 16, s)
        unpack(a, 67, 20, s)
        a(f"""
        v_mul_f32 v64, {LOG2E}, v64
        v_exp_f32 v64, v64
        v_mul_f32 v65, v65, v29
        v_cvt_pk_bf16_f32 v64, v64, v64
        v_lshlrev_b32 v64, 16, v64
        v_mul_f32 v64, v64, v29
        v_mul_f32 v{32+s}, 0xbfb8aa3b, v64
        v_mul_f32 v{40+s}, {INV2PI}, v65
        v_mul_f32 v{48+s}, v66, v29
        v_mul_f32 v{56+s}, v67, v29
        """)
    P = [24, 25, 26, 27]
    for s in range(8):
        for u in range(4): a(f"v_mul_f32 v{64+u}, v{32+s}, v{P[u]}")
        for u in range(4): a(f"v_mul_f32 v{68+u}, v{40+s}, v{P[u]}")
        for u in range(4): a(f"v_exp_f32 v{72+u}, v{64+u}")
        for u in range(4): a(f"v_fract_f32 v{68+u}, v{68+u}")
        for u in range(4): a(f"v_cos_f32 v{76+u}, v{68+u}")
        for u in range(4): a(f"v_sin_f32 v{80+u}, v{68+u}")
        for u in range(4): a(f"v_mul_f32 v{76+u}, v{72+u}, v{76+u}")
        for u in range(4): a(f"v_mul_f32 v{80+u}, v{72+u}, v{80+u}")
        for T in range(3): a(f"v_mul_f32 v{84+T}, v{48+s}, v{77+T}")
        for T in range(3): a(f"v_mul_f32 v{87+T}, v{48+s}, v{81+T}")
        for T in range(3): a(f"v_fma_f32 v{90+T}, -v{56+s}, v{81+T}, v{84+T}")
        for T in range(3): a(f"v_fma_f32 v{93+T}, -v{56+s}, v{77+T}, -v{87+T}")
        a("s_nop 1")
        for T in range(3): a(f"v_mfma_f32_16x16x4_f32 v[{100+4*T}:{103+4*T}], v{90+T}, v76, v[{100+4*T}:{103+4*T}]")
        for T in range(3): a(f"v_mfma_f32_16x16x4_f32 v[{100+4*T}:{103+4*T}], v{93+T}, v80, v[{100+4*T}:{103+4*T}]")
    stamp(a, 2)
    a("""
    v_mul_u32_u24 v6, 8704, v4
    v_lshl_add_u32 v6, v2, 5, v6      ; base = w*8704 + 32 i
    v_cmp_gt_u32 vcc, 2, v3           ; kq < 2
    v_lshrrev_b32 v7, 1, v3
    v_lshlrev_b32 v7, 9, v7           ; 128*(kq>>1)*4
    v_and_b32 v28, 1, v3
    v_lshl_add_u32 v7, v28, 4, v7     ; + 4*(kq&1)*4
    v_add_u32 v30, v6, v7             ; T0 base (+4r)
    v_lshlrev_b32 v7, 9, v3           ; 128*kq*4
    v_add_u32 v31, v6, v7
    v_add_u32 v31, 1024, v31
    v_lshlrev_b32 v7, 10, v3          ; 256*kq*4
    v_add_u32 v64, v6, v7
    v_lshlrev_b32 v7, 11, v3          ; 512*kq*4
    v_add_u32 v65, v6, v7
    v_add_u32 v65, 4096, v65
    v_add_u32 v66, 8192, v6           ; T2 case b
    s_nop 7
    """)
    for r in range(4):
        a(f"ds_write_b32 v30, v{100+r} offset:{4*r}")
    for r in range(4):
        a(f"v_add_u32 v67, {8*r}, v31")
        a(f"v_add_u32 v68, {512*(r>>1) + 16*(r&1)}, v64")
        a(f"v_cndmask_b32 v67, v68, v67, vcc")
        a(f"ds_write_b32 v67, v{104+r}")
    for r in range(4):
        a(f"v_add_u32 v67, {512*r}, v65")
        a(f"v_cndmask_b32 v67, v66, v67, vcc")
        a(f"ds_write_b32 v67, v{108+r}")
    a("s_waitcnt lgkmcnt(0)")
    a("s_barrier")
    stamp(a, 3)
    a("""
    v_lshlrev_b32 v6, 3, v0
    v_sub_u32 v6, 2047, v6        ; j0 = 2047 - 8t
    """)
    for e in range(0, 8, 2):
        a(f"""
        v_subrev_u32 v7, {e}, v6
        v_subrev_u32 v28, {e+1}, v6
        v_cvt_f32_u32 v7, v7
        v_cvt_f32_u32 v28, v28
        v_cvt_pk_bf16_f32 v7, v7, v28
        v_and_b32 v28, 0xffff0000, v7
        v_lshlrev_b32 v7, 16, v7
        v_cvt_u32_f32 v7, v7
        v_cvt_u32_f32 v28, v28
        v_lshlrev_b32 v{8+e}, 2, v7
        v_lshlrev_b32 v{9+e}, 2, v28
        """)
    for e in range(8):
        for w in range(4):
            a(f"ds_read_b32 v{32+4*e+w}, v{8+e} offset:{8704*w}")
    a("s_waitcnt lgkmcnt(0)")
    for e in range(8):
        b = 32 + 4*e
        a(f"v_add_f32 v{b}, v{b}, v{b+1}")
        a(f"v_add_f32 v{b+2}, v{b+2}, v{b+3}")
        a(f"v_add_f32 v{b}, v{b}, v{b+2}")
        a(f"v_add_f32 v{b}, v{b}, v{b}")
    for e in range(0, 8, 2):
        a(f"v_cvt_pk_bf16_f32 v{64+e//2}, v{32+4*e}, v{36+4*e}")
    a(f"""
    s_mul_i32 s3, s2, {KR_STRIDE}
    s_add_u32 s3, s3, {WS_KR}
    v_lshlrev_b32 v6, 4, v0
    buffer_store_dwordx4 v[64:67], v6, s[32:35], s3 offen
    """)
    stamp(a, 4); stamp_rt(a, 42); trace_rt(a, 1, 0)
    a(f"""
    v_mov_b32 v68, 0
    v_mov_b32 v69, 0
    v_mov_b32 v70, 0
    v_mov_b32 v71, 0
    v_cmp_gt_u32 vcc, 8, v0
    s_and_saveexec_b64 s[62:63], vcc
    s_cbranch_execz {name}_end
    v_add_u32 v6, 4096, v6
    buffer_store_dwordx4 v[68:71], v6, s[32:35], s3 offen
    s_branch {name}_end
    """)
    a.label(f"{name}_ln")
    srd(a, 36, 4, 2097152)
    a("""
    s_sub_u32 s3, s2, 512         ; b
    v_and_b32 v1, 63, v0
    v_lshrrev_b32 v4, 6, v0       ; w
    v_lshlrev_b32 v5, 13, v4      ; w*8 rows*1024
    v_lshl_add_u32 v5, v1, 4, v5
    s_lshl_b32 s40, s3, 15        ; b*32 rows*1024
    """)
    for rr in range(8):
        if rr < 4:
            a(f"buffer_load_dwordx4 v[{8+4*rr}:{11+4*rr}], v5, s[36:39], s40 offen offset:{1024*rr}")
        else:
            if rr == 4:
                a("v_add_u32 v6, 4096, v5")
            a(f"buffer_load_dwordx4 v[{8+4*rr}:{11+4*rr}], v6, s[36:39], s40 offen offset:{1024*(rr-4)}")
    a("v_mov_b32 v7, 0x3f803f80")
    a("""
    v_mul_u32_u24 v40, 8704, v4
    v_lshl_add_u32 v40, v1, 4, v40
    """)
    for rr in range(8):
        a(f"v_mov_b32 v{48+rr}, 0")
    for rr in range(8):
        a(f"s_waitcnt vmcnt({7-rr})")
        a(f"ds_write_b128 v40, v[{8+4*rr}:{11+4*rr}] offset:{1088*rr}")
        for q in range(4):
            a(f"v_dot2_f32_bf16 v{48+rr}, v{8+4*rr+q}, v7, v{48+rr}")
    def wave_reduce(base):
        a("s_nop 3")
        for rr in range(8): a(f"v_add_f32_dpp v{56+rr}, v{base+rr}, v{base+rr} quad_perm:[1,0,3,2] row_mask:0xf bank_mask:0xf")
        for rr in range(8): a(f"v_add_f32_dpp v{base+rr}, v{56+rr}, v{56+rr} quad_perm:[2,3,0,1] row_mask:0xf bank_mask:0xf")
        for rr in range(8): a(f"v_add_f32_dpp v{56+rr}, v{base+rr}, v{base+rr} row_half_mirror row_mask:0xf bank_mask:0xf")
        for rr in range(8): a(f"v_add_f32_dpp v{base+rr}, v{56+rr}, v{56+rr} row_mirror row_mask:0xf bank_mask:0xf")
        for rr in range(8): a(f"v_mov_b32 v{56+rr}, v{base+rr}")
        a("s_nop 1")
        for rr in range(8): a(f"v_permlane16_swap_b32 v{56+rr}, v{base+rr}")
        a("s_nop 1")
        for rr in range(8): a(f"v_add_f32 v{base+rr}, v{base+rr}, v{56+rr}")
        for rr in range(8): a(f"v_mov_b32 v{56+rr}, v{base+rr}")
        a("s_nop 1")
        for rr in range(8): a(f"v_permlane32_swap_b32 v{56+rr}, v{base+rr}")
        a("s_nop 1")
        for rr in range(8): a(f"v_add_f32 v{base+rr}, v{base+rr}, v{56+rr}")
    wave_reduce(48)
    for rr in range(8):
        a(f"v_mul_f32 v{48+rr}, 0x3b000000, v{48+rr}")
        a(f"v_mov_b32 v{64+rr}, 0")
    for rr in range(8):
        for e in range(8):
            unpack(a, 72, 8+4*rr, e)
            a(f"v_sub_f32 v72, v72, v{48+rr}")
            a(f"v_fmac_f32 v{64+rr}, v72, v72")
    wave_reduce(64)
    a("v_mov_b32 v72, v48")
    a("v_mov_b32 v73, v64")
    for rr in range(1, 8):
        a(f"v_cmp_eq_u32 vcc, {rr}, v1")
        a("s_nop 1")
        a(f"v_cndmask_b32 v72, v72, v{48+rr}, vcc")
        a(f"v_cndmask_b32 v73, v73, v{64+rr}, vcc")
    a(f"""
    v_lshl_add_u32 v74, v4, 3, v1     ; 8w + lane
    v_lshlrev_b32 v74, 2, v74
    s_lshl_b32 s41, s3, 7             ; b*32*4
    s_add_u32 s41, s41, {WS_ST1}
    v_mov_b32 v75, 0
    v_cmp_gt_u32 vcc, 8, v1
    s_and_saveexec_b64 s[62:63], vcc
    buffer_store_dword v72, v74, s[32:35], s41 offen
    s_add_u32 s42, s41, 8192
    buffer_store_dword v75, v74, s[32:35], s42 offen
    s_add_u32 s42, s41, 16384
    buffer_store_dword v73, v74, s[32:35], s42 offen
    s_mov_b64 exec, s[62:63]
    s_waitcnt lgkmcnt(0)
    s_barrier
    """)
    a("""
    v_lshrrev_b32 v6, 4, v1
    v_lshrrev_b32 v7, 2, v1
    v_and_b32 v7, 3, v7
    v_and_b32 v28, 3, v1
    v_mul_u32_u24 v7, 1088, v7
    v_lshl_add_u32 v7, v6, 5, v7
    v_lshl_add_u32 v7, v28, 3, v7
    v_lshl_add_u32 v7, v4, 8, v7      ; + w*256 bytes
    """)
    for st in range(2):
        for g in range(8):
            a(f"ds_read_b64_tr_b16 v[{8+16*st+2*g}:{9+16*st+2*g}], v7 offset:{128*st + 4352*g}")
    a(f"""
    v_lshl_add_u32 v6, v4, 7, v1
    v_lshlrev_b32 v6, 12, v6
    s_lshl_b32 s41, s3, 6
    s_add_u32 s41, s41, {WS_XT0}
    s_add_u32 s42, s41, {64*4096}
    s_waitcnt lgkmcnt(0)
    """)
    for st in range(2):
        for k in range(4):
            a(f"buffer_store_dwordx4 v[{8+16*st+4*k}:{11+16*st+4*k}], v6, s[32:35], s{41+st} offen offset:{16*k}")
    trace_rt(a, 1, 0)
    a(f"s_branch {name}_end")
    a.label(f"{name}_colsum")
    srd(a, 36, 20, D*DFF*2)
    a("""
    s_sub_u32 s3, s2, 576
    v_and_b32 v1, 7, v0           ; cg
    v_lshrrev_b32 v2, 3, v0       ; rg
    v_mul_u32_u24 v5, 57344, v2   ; rg*16*3584
    v_lshl_add_u32 v5, v1, 4, v5
    s_lshl_b32 s40, s3, 7
    """)
    for rr in range(16):
        a(f"buffer_load_dwordx4 v[{8+4*rr}:{11+4*rr}], v5, s[36:39], s40 offen")
        a("s_add_u32 s40, s40, 3584")
    for e in range(8):
        a(f"v_mov_b32 v{80+e}, 0")
    for rr in range(16):
        a(f"s_waitcnt vmcnt({15-rr})")
        for e in range(8):
            unpack(a, 72, 8+4*rr, e)
            a(f"v_add_f32 v{80+e}, v{80+e}, v72")
    a("""
    v_lshlrev_b32 v6, 5, v0
    ds_write_b128 v6, v[80:83]
    ds_write_b128 v6, v[84:87] offset:16
    s_waitcnt lgkmcnt(0)
    s_barrier
    v_cmp_gt_u32 vcc, 64, v0
    s_and_saveexec_b64 s[62:63], vcc
    """)
    a(f"s_cbranch_execz {name}_end")
    a("v_lshlrev_b32 v6, 2, v0")
    for k in range(32):
        a(f"ds_read_b32 v{8+k}, v6 offset:{256*k}")
    a("s_waitcnt lgkmcnt(0)")
    for k in range(1, 32):
        a(f"v_add_f32 v8, v8, v{8+k}")
    a(f"""
    s_lshl_b32 s41, s3, 8
    s_add_u32 s41, s41, {WS_CS}
    buffer_store_dword v8, v6, s[32:35], s41 offen
    """)
    trace_rt(a, 1, 0)
    a.label(f"{name}_end")
    a("s_endpgm")
    return 128
```

```python
import sys, os
import common
common.STAMP = bool(int(os.environ.get('STAMP','0')))
from common import *
from prep import gen_prep
from conv import gen_conv, CONV_LDS
from gemm1 import gen_gemm1, G1_LDS
from gemm2 import gen_gemm2, G2_LDS

HEADER = open("interleave_layers__ssm_conv_s4d__dense_activation_relu__prompt.s.ref").read().split("; Override launch")[0]

def main(out):
    a = Asm()
    descs = []
    common.SV = 125
    v = gen_prep(a, "prep_kernel"); common.SV = 253; descs.append(("prep_kernel", v))
    common.SV = 164
    common.KIDX = 1
    v = gen_conv(a, "conv1_kernel", WS_XT0, WS_XT1, WS_ST1); v = 168; descs.append(("conv1_kernel", v))
    common.SV = 164
    common.KIDX = 2
    v = gen_gemm1(a, "gemm1a_kernel", WS_XT1, True); v = 168; common.SV = 253; descs.append(("gemm1a_kernel", v))
    common.SV = 132
    common.KIDX = 3
    v = gen_gemm2(a, "gemm2a_kernel", WS_XT1, WS_XT2, False); v = 136; descs.append(("gemm2a_kernel", v))
    common.SV = 164
    common.KIDX = 4
    v = gen_conv(a, "conv2_kernel", WS_XT2, WS_XT3, WS_ST3); v = 168; descs.append(("conv2_kernel", v))
    common.SV = 164
    common.KIDX = 5
    v = gen_gemm1(a, "gemm1b_kernel", WS_XT3, False); v = 168; common.SV = 253; descs.append(("gemm1b_kernel", v))
    common.SV = 132
    common.KIDX = 6
    v = gen_gemm2(a, "gemm2b_kernel", WS_XT3, None, True); v = 136; descs.append(("gemm2b_kernel", v))
    launches = [
        ("prep_kernel", 604, 256, 34816),
        ("conv1_kernel", 512, 256, CONV_LDS),
        ("gemm1a_kernel", 224, 768, G1_LDS),
        ("gemm2a_kernel", 256, 512, G2_LDS),
        ("conv2_kernel", 512, 256, CONV_LDS),
        ("gemm1b_kernel", 224, 768, G1_LDS),
        ("gemm2b_kernel", 256, 512, G2_LDS),
    ]
    s = HEADER
    for k, g, b, l in launches:
        s += f"; @launch kernel={k} grid=({g},1,1) block=({b},1,1) lds={l}\n"
    s += '.amdgcn_target "amdgcn-amd-amdhsa--gfx950"\n'
    s += a.text()
    for k, v in descs:
        s += kernel_desc(k, v)
    open(out, "w").write(s)

if __name__ == "__main__":
    main(sys.argv[1] if len(sys.argv) > 1 else "interleave_layers__ssm_conv_s4d__dense_activation_relu__prompt.s")
```

```python
from common import *
import common, os
from prep import load_ptrs, unpack

KB = 0
KCS = 4160
UB = 16640
PBS = 9216
NW = 8
NMW = 4
CONV_LDS = PBS * NMW
CONV_THREADS = 64 * NW
STF = " sc0 sc1"

def bf16r_pair(a, pk, x0, x1, d0, d1):
    a(f"v_cvt_pk_bf16_f32 v{pk}, v{x0}, v{x1}")
    a(f"v_lshlrev_b32 v{d0}, 16, v{pk}")
    a(f"v_and_b32 v{d1}, 0xffff0000, v{pk}")

def gen_conv(a, name, xt_in, xt_out, st):
    kernel_begin(a, name)
    load_ptrs(a)
    a("s_cmp_ge_u32 s2, 512")
    a(f"s_cbranch_scc1 {name}_end")
    a(f"""
    v_lshlrev_b32 v1, 4, v0            ; 16 t
    v_lshlrev_b32 v2, 3, v0            ; 8 t
    v_lshrrev_b32 v45, 6, v0           ; w
    s_lshl_b32 s3, s2, 12
    s_add_u32 s36, s3, {xt_in}
    s_add_u32 s37, s3, {xt_out}
    s_mul_i32 s38, s2, {KR_STRIDE}
    s_add_u32 s38, s38, {WS_KR}
    s_mov_b32 s39, {st}
    s_mov_b32 s40, {st + 8192}
    s_mov_b32 s41, {st + 16384}
    v_readfirstlane_b32 s46, v45
    s_waitcnt lgkmcnt(0)
    """)
    srd(a, 32, 28, WS_SIZE)
    stamp_init(a); stamp(a, 0); stamp_rt(a, 40); trace_rt(a, 0, common.KIDX)
    a(f"""
    buffer_load_dwordx4 v[16:19], v1, s[32:35], s39 offen        ; piv
    buffer_load_dwordx4 v[20:23], v1, s[32:35], s40 offen        ; s1
    buffer_load_dwordx4 v[24:27], v1, s[32:35], s41 offen        ; s2
    buffer_load_dwordx2 v[4:5], v2, s[32:35], s36 offen          ; x
    s_lshr_b32 s3, s2, 1
    s_lshl_b32 s3, s3, 2
    s_add_u32 s16, s16, s3
    s_addc_u32 s17, s17, 0
    s_load_dword s42, s[16:17], 0
    v_mov_b32 v40, 0
    v_mov_b32 v41, 0
    v_mov_b32 v42, 0
    v_mov_b32 v43, 0
    s_cmp_ge_u32 s46, 4
    s_cbranch_scc1 {name}_hi
    buffer_load_dwordx4 v[8:11], v1, s[32:35], s38 offen         ; K chunk
    buffer_load_dwordx2 v[12:13], v1, s[32:35], s38 offen offset:16
    v_cmp_gt_u32 vcc, 4, v0
    s_and_saveexec_b64 s[44:45], vcc
    """)
    for s in range(4):
        a(f"ds_write_b128 v1, v[40:43] offset:{KB + KCS*s + 4096}")
    a(f"""
    s_mov_b64 exec, s[44:45]
    s_waitcnt vmcnt(0)
    ds_write_b128 v1, v[8:11] offset:{KB}
    v_alignbyte_b32 v52, v9, v8, 2
    v_alignbyte_b32 v53, v10, v9, 2
    v_alignbyte_b32 v54, v11, v10, 2
    v_alignbyte_b32 v55, v12, v11, 2
    v_alignbyte_b32 v56, v13, v12, 2
    v_mov_b32 v60, v9
    v_mov_b32 v61, v10
    v_mov_b32 v62, v11
    v_mov_b32 v63, v12
    ds_write_b128 v1, v[52:55] offset:{KB + KCS}
    ds_write_b128 v1, v[60:63] offset:{KB + 2*KCS}
    v_mov_b32 v8, v53
    v_mov_b32 v9, v54
    v_mov_b32 v10, v55
    v_mov_b32 v11, v56
    ds_write_b128 v1, v[8:11] offset:{KB + 3*KCS}
    s_branch {name}_join
    """)
    a.label(f"{name}_hi")
    a(f"""
    v_cmp_gt_u32 vcc, 416, v0
    s_and_saveexec_b64 s[44:45], vcc
    ds_write_b128 v1, v[40:43] offset:{UB - 4096}
    s_mov_b64 exec, s[44:45]
    """)
    a.label(f"{name}_join")
    a(f"""
    v_and_b32 v44, 63, v0              ; lane
    v_and_b32 v46, 31, v44             ; i / a
    v_lshrrev_b32 v47, 5, v44          ; g
    v_and_b32 v48, 3, v46
    v_sub_u32 v48, 3, v48              ; s = 3 - (i&3)
    v_mul_u32_u24 v48, {KCS}, v48
    v_lshrrev_b32 v49, 2, v46
    v_lshlrev_b32 v49, 3, v49          ; 2*4*(i>>2)
    v_sub_u32 v48, v48, v49
    v_lshl_add_u32 v48, v47, 4, v48    ; + 2*8g
    v_lshlrev_b32 v49, 9, v45          ; 2*32*8*w
    v_sub_u32 v48, v48, v49
    v_add_u32 v48, {KB + 2*(2044 - 32*39)}, v48     ; vA
    v_lshlrev_b32 v49, 3, v45
    v_sub_u32 v49, v46, v49            ; a - 8w
    v_add_u32 v49, 25, v49             ; 32 + a - 8w - 7
    v_mul_u32_u24 v49, 80, v49
    v_lshl_add_u32 v49, v47, 4, v49
    v_add_u32 v49, {UB}, v49           ; vB
    v_lshrrev_b32 v50, 3, v0
    v_and_b32 v51, 7, v0
    v_mul_u32_u24 v57, 80, v50
    v_lshl_add_u32 v57, v51, 3, v57
    v_mul_u32_u24 v58, 144, v50
    v_lshl_add_u32 v58, v51, 4, v58
    v_mul_u32_u24 v59, {PBS}, v45
    v_mul_u32_u24 v50, 144, v46
    v_add_u32 v59, v59, v50
    v_lshl_add_u32 v59, v47, 4, v59
    """)
    for r in range(32):
        a(f"v_mov_b32 v{64+r}, 0")
    a("s_waitcnt vmcnt(1)")
    stamp(a, 1)
    for e in range(4):
        a(f"v_mul_f32 v{20+e}, 0x3b000000, v{20+e}")
        a(f"v_mul_f32 v{24+e}, 0x3b000000, v{24+e}")
        a(f"v_add_f32 v{16+e}, v{16+e}, v{20+e}")
        a(f"v_fma_f32 v{24+e}, -v{20+e}, v{20+e}, v{24+e}")
        a(f"v_max_f32 v{24+e}, 0, v{24+e}")
    for e in range(0, 4, 2):
        bf16r_pair(a, 50, 16+e, 17+e, 16+e, 17+e)
        bf16r_pair(a, 51, 24+e, 25+e, 24+e, 25+e)
    for e in range(4):
        a(f"v_add_f32 v{24+e}, 0x3727c5ac, v{24+e}")
    for e in range(0, 4, 2):
        bf16r_pair(a, 51, 24+e, 25+e, 24+e, 25+e)
    for e in range(4):
        a(f"v_sqrt_f32 v{20+e}, v{24+e}")
    a("s_nop 0")
    for e in range(0, 4, 2):
        bf16r_pair(a, 51, 20+e, 21+e, 20+e, 21+e)
    for e in range(4):
        a(f"v_rcp_f32 v{24+e}, v{20+e}")
    a("s_waitcnt vmcnt(0)")
    for e in range(4):
        unpack(a, 28+e, 4, e)
    for e in range(4):
        a(f"v_sub_f32 v{32+e}, v{28+e}, v{16+e}")
    for e in range(0, 4, 2):
        bf16r_pair(a, 50, 32+e, 33+e, 32+e, 33+e)
    for e in range(4):
        a(f"v_mul_f32 v{36+e}, v{32+e}, v{24+e}")
    for e in range(4):
        a(f"v_fma_f32 v{32+e}, -v{36+e}, v{20+e}, v{32+e}")
    for e in range(4):
        a(f"v_fmac_f32 v{36+e}, v{32+e}, v{24+e}")
    for e in range(0, 4, 2):
        bf16r_pair(a, 6+e//2, 36+e, 37+e, 36+e, 37+e)
    a(f"ds_write_b64 v57, v[6:7] offset:{UB + 2560}")
    stamp(a, 2)
    a("s_waitcnt lgkmcnt(0)")
    a("s_barrier")
    stamp(a, 3)
    steps = [(cc, h) for cc in range(8) for h in range(2)]
    NS = len(steps)
    def rd(n, which):
        cc, h = steps[n]
        b = 96 + 16*(n & 1)
        oa = 2*(32*(7-cc) + 16*h)
        ob = 80*(7-cc) + 32*h
        if which == 0:
            a(f"ds_read_b64 v[{b}:{b+1}], v48 offset:{oa + 2048}")
            a(f"ds_read_b64 v[{b+2}:{b+3}], v48 offset:{oa + 2048 + 8}")
            a(f"ds_read_b128 v[{b+12}:{b+15}], v49 offset:{ob + 2560}")
        elif which == 1:
            a(f"ds_read_b128 v[{b+8}:{b+11}], v49 offset:{ob}")
        else:
            a(f"ds_read_b64 v[{b+4}:{b+5}], v48 offset:{oa}")
            a(f"ds_read_b64 v[{b+6}:{b+7}], v48 offset:{oa + 8}")
    a("s_cmp_ge_u32 s46, 4")
    a(f"s_cbranch_scc1 {name}_skipmain")
    rd(0, 0); rd(0, 1); rd(0, 2)
    for n in range(NS):
        last = n == NS - 1
        b = 96 + 16*(n & 1)
        a("s_waitcnt lgkmcnt(3)")
        a(f"v_mfma_f32_32x32x16_bf16 v[80:95], v[{b}:{b+3}], v[{b+12}:{b+15}], v[80:95]")
        if not last: rd(n+1, 0)
        a(f"s_waitcnt lgkmcnt({2 if last else 5})")
        a(f"v_mfma_f32_32x32x16_bf16 v[64:79], v[{b}:{b+3}], v[{b+8}:{b+11}], v[64:79]")
        if not last: rd(n+1, 1)
        a(f"s_waitcnt lgkmcnt({0 if last else 4})")
        a(f"v_mfma_f32_32x32x16_bf16 v[80:95], v[{b+4}:{b+7}], v[{b+8}:{b+11}], v[80:95]")
        if not last: rd(n+1, 2)
    a.label(f"{name}_skipmain")
    a("""
    s_and_b32 s43, s2, 1
    s_lshl_b32 s43, s43, 4
    s_lshr_b32 s42, s42, s43
    s_lshl_b32 s42, s42, 16
    """)
    for e in range(4):
        a(f"v_mul_f32 v{32+e}, s42, v{36+e}")
    for e in range(0, 4, 2):
        bf16r_pair(a, 50, 32+e, 33+e, 32+e, 33+e)
    a("s_barrier")
    stamp(a, 4)
    a("s_cmp_ge_u32 s46, 4")
    a(f"s_cbranch_scc1 {name}_skipw")
    a("s_nop 3")
    for T in range(2):
        for q in range(4):
            a(f"ds_write_b128 v59, v[{64+16*T+4*q}:{67+16*T+4*q}] offset:{144*32*T + 32*q}")
    a("s_waitcnt lgkmcnt(0)")
    a.label(f"{name}_skipw")
    a("s_barrier")
    for w in range(NMW):
        a(f"ds_read_b128 v[{96+4*w}:{99+4*w}], v58 offset:{PBS*w}")
    for w in range(0, NMW, 2):
        a(f"s_waitcnt lgkmcnt({NMW-2-w})")
        for e in range(4):
            a(f"v_add_f32 v{96+4*w+e}, v{96+4*w+e}, v{100+4*w+e}")
    for e in range(4):
        a(f"v_add_f32 v{96+e}, v{96+e}, v{104+e}")
    for e in range(0, 4, 2):
        bf16r_pair(a, 50, 96+e, 97+e, 96+e, 97+e)
    for e in range(4):
        a(f"v_add_f32 v{96+e}, v{96+e}, v{32+e}")
    for e in range(0, 4, 2):
        bf16r_pair(a, 50, 96+e, 97+e, 96+e, 97+e)
    for e in range(4):
        a(f"v_add_f32 v{96+e}, v{96+e}, v{28+e}")
    for e in range(0, 4, 2):
        a(f"v_cvt_pk_bf16_f32 v{100+e//2}, v{96+e}, v{97+e}")
    a("buffer_store_dwordx2 v[100:101], v2, s[32:35], s37 offen" + STF)
    stamp(a, 5)
    if common.STAMP:
        a("s_waitcnt vmcnt(0)")
    stamp(a, 6); stamp_rt(a, 42); trace_rt(a, 1, common.KIDX)
    a.label(f"{name}_end")
    a("s_endpgm")
    return 128
```

```python
from common import *
import common, os
from prep import load_ptrs
from conv import bf16r_pair

G1_LDS = 131072 + 2048
SB = 131072

def gen_gemm1(a, name, xt_in, write_piv):
    kernel_begin(a, name)
    load_ptrs(a)
    a("s_cmp_ge_u32 s2, 224")
    a(f"s_cbranch_scc1 {name}_end")
    a("""
    v_and_b32 v1, 63, v0          ; lane
    v_lshrrev_b32 v2, 6, v0       ; wave
    v_lshrrev_b32 v3, 4, v1       ; q = L>>4
    v_and_b32 v4, 15, v1          ; slot
    v_readfirstlane_b32 s42, v2
    v_and_b32 v2, 3, v2
    s_and_b32 s3, s2, 6
    s_lshl_b32 s3, s3, 1          ; 4*(xcd>>1)
    s_lshr_b32 s40, s2, 3
    s_and_b32 s40, s40, 3
    s_add_u32 s40, s3, s40        ; lt
    s_and_b32 s3, s2, 1
    s_mul_i32 s3, s3, 7
    s_lshr_b32 s41, s2, 5
    s_add_u32 s41, s41, s3        ; ft
    v_lshrrev_b32 v12, 2, v1
    v_and_b32 v12, 3, v12         ; r
    v_and_b32 v13, 3, v1          ; c
    v_lshrrev_b32 v14, 1, v3      ; q>>1
    v_lshl_add_u32 v14, v14, 3, v12
    v_lshlrev_b32 v14, 8, v14
    v_and_b32 v15, 1, v3
    v_lshl_add_u32 v14, v15, 5, v14
    v_lshrrev_b32 v15, 1, v13
    v_lshl_add_u32 v14, v15, 4, v14
    v_and_b32 v15, 1, v13
    v_lshl_add_u32 v14, v15, 3, v14
    s_waitcnt lgkmcnt(0)
    """)
    srd(a, 32, 28, WS_SIZE)
    stamp_init(a); stamp(a, 0); stamp_rt(a, 40); trace_rt(a, 0, common.KIDX)
    a("s_cmp_lt_u32 s42, 4")
    a(f"s_cbranch_scc1 {name}_compute")
    a("s_cmp_ge_u32 s42, 8")
    a(f"s_cbranch_scc1 {name}_stats")
    srd(a, 36, 20, D*DFF*2)
    a(f"""
    s_and_b32 s42, s42, 3
    v_lshlrev_b32 v5, 2, v3
    v_xor_b32 v4, v4, v5
    v_lshl_add_u32 v5, v2, 4, v3  ; row = 16w + (L>>4)
    v_mul_u32_u24 v6, 3584, v5
    v_lshl_add_u32 v6, v4, 4, v6  ; voffset w1
    v_lshlrev_b32 v7, 12, v5
    v_lshl_add_u32 v7, v4, 4, v7
    s_lshl_b32 s43, s41, 8
    s_lshl_b32 s44, s40, 8
    s_add_u32 s44, s44, {xt_in}
    s_lshl_b32 s45, s42, 12
    """)
    def dma(stage):
        buf = stage & 3
        for j in range(4):
            a(f"s_add_u32 s46, s44, {(64*stage + 4*j)*4096}")
            a(f"s_add_u32 m0, s45, {buf*32768 + 16384 + j*1024}")
            a("s_nop 0")
            a("buffer_load_dwordx4 v7, s[32:35], s46 offen lds")
        for j in range(4):
            a(f"s_add_u32 s46, s43, {(64*stage + 4*j)*3584}")
            a(f"s_add_u32 m0, s45, {buf*32768 + j*1024}")
            a("s_nop 0")
            a("buffer_load_dwordx4 v6, s[36:39], s46 offen lds")
    dma(0)
    dma(1)
    a("s_waitcnt vmcnt(8)")
    a("s_barrier")
    dma(2)
    dma(3)
    for st in range(1, 8):
        n = 8 * (min(st + 2, 7) - st)
        a(f"s_waitcnt vmcnt({n})")
        a("s_barrier")
        if st + 3 < 8:
            dma(st + 3)
    a("s_endpgm")
    a.label(f"{name}_stats")
    a(f"""
    v_and_b32 v36, 31, v1
    v_lshl_add_u32 v36, v2, 5, v36
    v_lshlrev_b32 v37, 2, v36
    s_lshl_b32 s47, s41, 9
    s_add_u32 s47, s47, {WS_CS}
    buffer_load_dword v30, v37, s[32:35], s47 offen
    v_add_u32 v31, {SB + 1024}, v37
    """)
    a("""
    v_xor_b32 v15, v2, v12
    v_lshl_add_u32 v18, v15, 6, v14
    v_add_u32 v18, 0x4000, v18
    v_add_u32 v22, 0x10000, v18
    v_mov_b32 v28, 0x3f803f80
    """)
    for k in range(8):
        a(f"v_mov_b32 v{32+k}, 0")
    for st in range(8):
        a("s_barrier")
        buf = st & 3
        ad = 22 if buf >= 2 else 18
        for ks in range(4):
            off = (buf & 1)*32768 + ks*4096
            a(f"ds_read_b64_tr_b16 v[{64+4*ks}:{65+4*ks}], v{ad} offset:{off}")
            a(f"ds_read_b64_tr_b16 v[{66+4*ks}:{67+4*ks}], v{ad} offset:{off+1024}")
        for ks in range(4):
            a(f"s_waitcnt lgkmcnt({6-2*ks})")
            for k in range(4 if not os.environ.get("NOSTATS") else 0):
                t = 80 + 2*(k & 1)
                a(f"v_lshlrev_b32 v{t}, 16, v{64+4*ks+k}")
                a(f"v_and_b32 v{t+1}, 0xffff0000, v{64+4*ks+k}")
                a(f"v_add_f32 v{32+2*(k&1)}, v{32+2*(k&1)}, v{t}")
                a(f"v_add_f32 v{33+2*(k&1)}, v{33+2*(k&1)}, v{t+1}")
                a(f"v_fmac_f32 v{36+2*(k&1)}, v{t}, v{t}")
                a(f"v_fmac_f32 v{37+2*(k&1)}, v{t+1}, v{t+1}")
    a("""
    s_nop 3
    v_add_f32 v32, v32, v33
    v_add_f32 v34, v34, v35
    v_add_f32 v36, v36, v37
    v_add_f32 v38, v38, v39
    v_add_f32 v24, v32, v34
    v_add_f32 v26, v36, v38
    v_mov_b32 v32, v24
    v_mov_b32 v33, v26
    s_nop 1
    v_permlane32_swap_b32 v32, v24
    v_permlane32_swap_b32 v33, v26
    s_nop 1
    v_add_f32 v24, v24, v32
    v_add_f32 v26, v26, v33
    v_mul_f32 v24, 0x3b000000, v24       ; mean
    v_mul_f32 v26, 0x3b000000, v26
    v_fma_f32 v26, -v24, v24, v26
    v_max_f32 v26, 0, v26
    v_and_b32 v36, 31, v1
    v_lshl_add_u32 v36, v2, 5, v36
    """)
    if write_piv:
        a(f"""
        s_cmp_lg_u32 s41, 0
        s_cbranch_scc1 {name}_nopiv
        v_lshlrev_b32 v37, 2, v36
        s_lshl_b32 s48, s40, 9
        s_add_u32 s48, s48, {WS_ST3}
        s_add_u32 s49, s48, 8192
        s_add_u32 s50, s48, 16384
        v_mov_b32 v38, 0
        v_cmp_gt_u32 vcc, 32, v1
        s_and_saveexec_b64 s[52:53], vcc
        buffer_store_dword v24, v37, s[32:35], s48 offen
        buffer_store_dword v38, v37, s[32:35], s49 offen
        buffer_store_dword v38, v37, s[32:35], s50 offen
        s_mov_b64 exec, s[52:53]
        """)
        a.label(f"{name}_nopiv")
    bf16r_pair(a, 39, 24, 26, 40, 42)
    a("v_add_f32 v42, 0x3727c5ac, v42")
    bf16r_pair(a, 39, 42, 42, 42, 43)
    a("v_sqrt_f32 v42, v42")
    a("s_nop 0")
    bf16r_pair(a, 39, 42, 42, 42, 43)
    a("v_rcp_f32 v41, v42")
    a(f"""
    v_lshlrev_b32 v37, 3, v36
    v_add_u32 v37, {SB}, v37
    ds_write_b64 v37, v[40:41]
    s_waitcnt vmcnt(0)
    ds_write_b32 v31, v30
    s_waitcnt lgkmcnt(0)
    s_barrier
    s_endpgm
    """)
    a.label(f"{name}_compute")
    a(f"""
    v_and_b32 v8, 1, v2           ; wf
    v_lshrrev_b32 v9, 1, v2       ; wl
    v_lshrrev_b32 v10, 5, v1      ; g
    """)
    for t in range(2):
        a(f"""
        v_lshl_add_u32 v15, v8, 1, {t}
        v_xor_b32 v15, v15, v12
        v_lshl_add_u32 v{16+t}, v15, 6, v14
        v_add_u32 v{20+t}, 0x10000, v{16+t}
        v_lshl_add_u32 v15, v9, 1, {t}
        v_xor_b32 v15, v15, v12
        v_lshl_add_u32 v{18+t}, v15, 6, v14
        v_add_u32 v{18+t}, 0x4000, v{18+t}
        v_add_u32 v{22+t}, 0x10000, v{18+t}
        """)
    ACC = 32; FR = 96
    for r in range(64):
        a(f"v_mov_b32 v{ACC+r}, 0")
    a(f"""
    v_and_b32 v24, 31, v1
    v_lshl_add_u32 v24, v9, 6, v24     ; 64 wl + (L&31)
    v_lshlrev_b32 v25, 3, v24
    v_add_u32 v25, {SB}, v25
    v_mul_u32_u24 v26, 272, v24
    v_lshl_add_u32 v26, v8, 7, v26
    v_lshl_add_u32 v26, v10, 3, v26
    v_lshrrev_b32 v27, 4, v0
    v_and_b32 v30, 15, v0
    v_mul_u32_u24 v31, 272, v27
    v_lshl_add_u32 v31, v30, 4, v31
    v_mul_u32_u24 v27, 3584, v27
    v_lshl_add_u32 v27, v30, 4, v27
    v_lshlrev_b32 v28, 8, v8
    v_lshl_add_u32 v28, v10, 4, v28
    v_add_u32 v28, {SB + 1024}, v28
    v_mov_b32 v29, 0
    s_mul_i32 s48, s40, {128*3584}
    s_lshl_b32 s49, s41, 8
    s_add_u32 s48, s48, s49
    s_add_u32 s48, s48, {WS_H}
    """)
    def rd(n, which, t):
        stage, ks, p = n // 4, n % 4, n % 3
        buf = stage & 3
        hi = buf >= 2
        off = (buf & 1)*32768 + ks*4096
        b = FR + 16*p + (8 if which == 'B' else 0) + 4*t
        ad = ((22 if hi else 18) if which == 'B' else (20 if hi else 16)) + t
        a(f"ds_read_b64_tr_b16 v[{b}:{b+1}], v{ad} offset:{off}")
        a(f"ds_read_b64_tr_b16 v[{b+2}:{b+3}], v{ad} offset:{off+1024}")
    def mfma(p, tf, tl):
        b = FR + 16*p
        acc = ACC + 32*tf + 16*tl
        a(f"v_mfma_f32_32x32x16_bf16 v[{acc}:{acc+15}], v[{b+4*tf}:{b+4*tf+3}], v[{b+8+4*tl}:{b+8+4*tl+3}], v[{acc}:{acc+15}]")
    a("s_barrier")
    stamp(a, 1)
    for n in range(2):
        rd(n, 'A', 0); rd(n, 'B', 0); rd(n, 'A', 1); rd(n, 'B', 1)
    for n in range(32):
        p = n % 3
        more = n + 2 < 32
        newstage = more and ((n + 2) % 4 == 0)
        if newstage or n == 31:
            a("s_waitcnt lgkmcnt(0)")
        else:
            a("s_waitcnt lgkmcnt(8)")
        mfma(p, 0, 0)
        if newstage:
            a("s_barrier")
            stamp(a, 1 + (n+2)//4)
        if more: rd(n+2, 'A', 0)
        mfma(p, 1, 0)
        if more: rd(n+2, 'B', 0)
        mfma(p, 0, 1)
        if more: rd(n+2, 'A', 1)
        mfma(p, 1, 1)
        if more: rd(n+2, 'B', 1)
    stamp(a, 9)
    a("s_barrier")
    stamp(a, 12)
    a("ds_read_b64 v[144:145], v25")
    a("ds_read_b64 v[148:149], v25 offset:256")
    for tf in range(2):
        for qd in range(4):
            a(f"ds_read_b128 v[{FR+16*tf+4*qd}:{FR+3+16*tf+4*qd}], v28 offset:{128*tf + 32*qd}")
    a("""
    s_waitcnt lgkmcnt(8)
    v_mov_b32 v146, v145
    v_mov_b32 v147, v145
    v_mov_b32 v145, v144
    v_mov_b32 v150, v149
    v_mov_b32 v151, v149
    v_mov_b32 v149, v148
    s_waitcnt lgkmcnt(0)
    """)
    mp = [144, 148]; rp = [146, 150]
    for tf in range(2):
        for tl in range(2):
            acc = ACC + 32*tf + 16*tl
            ob = 128 + 8*tl
            for r in range(0, 16, 2):
                cs = FR + 16*tf + r
                a(f"v_pk_fma_f32 v[{acc+r}:{acc+r+1}], v[{mp[tl]}:{mp[tl]+1}], v[{cs}:{cs+1}], v[{acc+r}:{acc+r+1}] neg_lo:[1,0,0] neg_hi:[1,0,0]")
            for r in range(0, 16, 2):
                a(f"v_pk_mul_f32 v[{acc+r}:{acc+r+1}], v[{acc+r}:{acc+r+1}], v[{rp[tl]}:{rp[tl]+1}]")
            for r in range(0, 16, 2):
                a(f"v_cvt_pk_bf16_f32 v{ob+r//2}, v{acc+r}, v{acc+r+1}")
            for r in range(8):
                a(f"v_pk_max_i16 v{ob+r}, v{ob+r}, v29")
            for qd in range(4):
                a(f"ds_write_b64 v26, v[{ob+2*qd}:{ob+2*qd+1}] offset:{272*32*tl + 64*tf + 16*qd}")
    stamp(a, 13)
    a("s_waitcnt lgkmcnt(0)")
    a("s_barrier")
    stamp(a, 14)
    for k in range(8):
        a(f"ds_read_b128 v[{ACC+4*k}:{ACC+3+4*k}], v31 offset:{272*16*k}")
    for k in range(8):
        a(f"s_waitcnt lgkmcnt({7-k})")
        a(f"buffer_store_dwordx4 v[{ACC+4*k}:{ACC+3+4*k}], v27, s[32:35], s48 offen " + os.environ.get("HST", "sc0 sc1"))
        if k < 7:
            a(f"s_add_u32 s48, s48, {16*3584}")
    stamp(a, 10)
    if common.STAMP:
        a("s_waitcnt vmcnt(0)")
    stamp(a, 11); stamp_rt(a, 42); trace_rt(a, 1, common.KIDX)
    a.label(f"{name}_end")
    a("s_endpgm")
    return 160
```

```python
from common import *
import common

LOG2E = "0x3fb8aa3b"
INV2PI = "0x3e22f983"
NLN = 128
NCS = 28
NPREP = NLN + NCS + 512
PREP_LDS = 4 * 3072 + 9792 + 256

def load_ptrs(a):
    a("s_load_dwordx16 s[4:19], s[0:1], 0")
    a("s_load_dwordx8 s[20:27], s[0:1], 64")
    a("s_load_dwordx2 s[28:29], s[0:1], 96")

def unpack(a, dst, base, e):
    if e % 2 == 0:
        a(f"v_lshlrev_b32 v{dst}, 16, v{base + e//2}")
    else:
        a(f"v_and_b32 v{dst}, 0xffff0000, v{base + e//2}")

def gen_prep(a, name="prep_kernel"):
    kernel_begin(a, name)
    load_ptrs(a)
    a(f"s_cmp_ge_u32 s2, {NPREP}")
    a(f"s_cbranch_scc1 {name}_end")
    a("s_waitcnt lgkmcnt(0)")
    srd(a, 32, 28, WS_SIZE)
    stamp_init(a); trace_rt(a, 0, 0)
    a(f"s_cmp_ge_u32 s2, {512+NLN}")
    a(f"s_cbranch_scc1 {name}_colsum")
    a(f"s_cmp_ge_u32 s2, 512")
    a(f"s_cbranch_scc1 {name}_ln")
    srd(a, 36, 6, 131072)
    srd(a, 40, 8, 131072)
    srd(a, 44, 10, 131072)
    srd(a, 48, 12, 131072)
    a("""
    v_and_b32 v1, 63, v0
    v_and_b32 v2, 15, v0          ; i
    v_lshrrev_b32 v3, 4, v1       ; kq
    v_lshrrev_b32 v4, 6, v0       ; w
    v_lshlrev_b32 v5, 6, v4       ; w*64 bytes
    v_lshl_add_u32 v5, v3, 4, v5  ; + kq*16
    s_lshl_b32 s3, s2, 8          ; d*256 bytes
    buffer_load_dwordx4 v[8:11], v5, s[36:39], s3 offen
    buffer_load_dwordx4 v[12:15], v5, s[40:43], s3 offen
    buffer_load_dwordx4 v[16:19], v5, s[44:47], s3 offen
    buffer_load_dwordx4 v[20:23], v5, s[48:51], s3 offen
    s_lshr_b32 s3, s2, 1
    s_lshl_b32 s3, s3, 2
    s_add_u32 s14, s14, s3
    s_addc_u32 s15, s15, 0
    s_load_dword s60, s[14:15], 0
    """)
    a("""
    v_lshlrev_b32 v6, 3, v2
    v_cvt_f32_u32 v24, v6
    v_lshrrev_b32 v6, 3, v2
    v_lshlrev_b32 v6, 7, v6
    v_and_b32 v7, 7, v2
    v_add_u32 v6, v6, v7
    v_cvt_f32_u32 v25, v6
    v_cmp_gt_u32 vcc, 8, v2       ; i < 8
    v_lshrrev_b32 v6, 2, v2
    v_lshlrev_b32 v6, 7, v6
    v_and_b32 v7, 3, v2
    v_lshl_add_u32 v6, v7, 1, v6
    v_add_u32 v6, 256, v6         ; case i<8
    v_and_b32 v7, 7, v2           ; x = i-8 (when i>=8)
    v_lshrrev_b32 v28, 1, v7
    v_lshlrev_b32 v28, 7, v28
    v_and_b32 v7, 1, v7
    v_lshl_add_u32 v28, v7, 2, v28
    v_add_u32 v28, 512, v28
    v_cndmask_b32 v6, v28, v6, vcc
    v_cvt_f32_u32 v26, v6
    v_lshlrev_b32 v6, 7, v2
    v_add_u32 v6, 1024, v6
    v_mov_b32 v7, 2048
    v_cndmask_b32 v6, v7, v6, vcc
    v_cvt_f32_u32 v27, v6
    """)
    FT = 4 * 3072
    a("""
    v_lshlrev_b32 v6, 3, v0
    v_sub_u32 v6, 2047, v6        ; j0 = 2047 - 8t
    """)
    for e in range(0, 8, 2):
        a(f"""
        v_subrev_u32 v7, {e}, v6
        v_subrev_u32 v28, {e+1}, v6
        v_cvt_f32_u32 v7, v7
        v_cvt_f32_u32 v28, v28
        v_cvt_pk_bf16_f32 v7, v7, v28
        v_and_b32 v28, 0xffff0000, v7
        v_lshlrev_b32 v7, 16, v7
        v_cvt_u32_f32 v7, v7
        v_cvt_u32_f32 v28, v28
        v_lshrrev_b32 v30, 3, v7
        v_lshrrev_b32 v31, 3, v28
        v_add_lshl_u32 v{112+e}, v7, v30, 2
        v_add_lshl_u32 v{113+e}, v28, v31, 2
        """)
    a(f"""
    v_cmp_gt_u32 vcc, 2, v3           ; kq < 2
    v_lshrrev_b32 v7, 1, v3
    v_lshlrev_b32 v7, 7, v7           ; 128*(kq>>1)
    v_and_b32 v28, 1, v3
    v_lshl_add_u32 v7, v28, 2, v7     ; + 4*(kq&1)
    v_add_u32 v7, v7, v4              ; + r
    v_lshl_add_u32 v120, v2, 3, v7    ; pos T0
    v_lshlrev_b32 v7, 7, v3           ; 128 kq
    v_lshl_add_u32 v7, v4, 1, v7      ; + 2r
    v_add_u32 v7, 256, v7             ; case a
    v_lshlrev_b32 v28, 8, v3
    v_lshrrev_b32 v30, 1, v4
    v_lshl_add_u32 v28, v30, 7, v28   ; + 128 (r>>1)
    v_and_b32 v30, 1, v4
    v_lshl_add_u32 v28, v30, 2, v28   ; + 4 (r&1)
    v_cndmask_b32 v7, v28, v7, vcc
    v_lshl_add_u32 v121, v2, 3, v7    ; pos T1
    v_lshl_add_u32 v7, v3, 2, v4      ; 4kq + r
    v_lshlrev_b32 v7, 7, v7
    v_add_u32 v7, 1024, v7
    v_mov_b32 v28, 2048
    v_cndmask_b32 v7, v28, v7, vcc
    v_lshl_add_u32 v122, v2, 3, v7    ; pos T2
    """)
    for k in range(3):
        a(f"v_lshrrev_b32 v7, 3, v{120+k}")
        a(f"v_add_lshl_u32 v{120+k}, v{120+k}, v7, 2")
    a("s_waitcnt lgkmcnt(0)")
    a("""
    s_and_b32 s61, s2, 1
    s_lshl_b32 s61, s61, 4
    s_lshr_b32 s60, s60, s61
    s_lshl_b32 s60, s60, 16
    v_mov_b32 v6, s60
    v_mul_f32 v6, %s, v6
    v_exp_f32 v6, v6
    s_nop 0
    v_cvt_pk_bf16_f32 v6, v6, v6
    v_lshlrev_b32 v29, 16, v6     ; v29 = dt
    """ % LOG2E)
    for r in range(12):
        a(f"v_mov_b32 v{100+r}, 0")
    a("s_waitcnt vmcnt(0)")
    P = [24, 25, 26, 27]
    for s in range(8):
        unpack(a, 64, 8, s)
        unpack(a, 65, 12, s)
        unpack(a, 66, 16, s)
        unpack(a, 67, 20, s)
        a(f"""
        v_mul_f32 v64, {LOG2E}, v64
        v_exp_f32 v64, v64
        v_mul_f32 v65, v65, v29
        v_cvt_pk_bf16_f32 v64, v64, v64
        v_lshlrev_b32 v64, 16, v64
        v_mul_f32 v64, v64, v29
        v_mul_f32 v32, 0xbfb8aa3b, v64
        v_mul_f32 v33, {INV2PI}, v65
        v_mul_f32 v34, v66, v29
        v_mul_f32 v35, v67, v29
        """)
        for u in range(4): a(f"v_mul_f32 v{64+u}, v32, v{P[u]}")
        for u in range(4): a(f"v_mul_f32 v{68+u}, v33, v{P[u]}")
        for u in range(4): a(f"v_exp_f32 v{72+u}, v{64+u}")
        for u in range(4): a(f"v_fract_f32 v{68+u}, v{68+u}")
        for u in range(4): a(f"v_cos_f32 v{76+u}, v{68+u}")
        for u in range(4): a(f"v_sin_f32 v{80+u}, v{68+u}")
        for u in range(4): a(f"v_mul_f32 v{76+u}, v{72+u}, v{76+u}")
        for u in range(4): a(f"v_mul_f32 v{80+u}, v{72+u}, v{80+u}")
        a("""
        v_mul_f32 v84, v34, v76
        v_mul_f32 v85, v34, v80
        v_fma_f32 v84, -v35, v80, v84
        v_fma_f32 v85, -v35, v76, -v85
        s_nop 1
        """)
        for T in range(3): a(f"v_mfma_f32_16x16x4_f32 v[{100+4*T}:{103+4*T}], v{77+T}, v84, v[{100+4*T}:{103+4*T}]")
        for T in range(3): a(f"v_mfma_f32_16x16x4_f32 v[{100+4*T}:{103+4*T}], v{81+T}, v85, v[{100+4*T}:{103+4*T}]")
    a("""
    v_mul_u32_u24 v6, 3072, v4
    v_lshl_add_u32 v6, v1, 2, v6
    v_lshlrev_b32 v7, 2, v0           ; t*4  (= r*256 + lane*4)
    s_nop 7
    s_nop 1
    """)
    for r in range(12):
        a(f"ds_write_b32 v6, v{100+r} offset:{256*r}")
    a("s_waitcnt lgkmcnt(0)")
    a("s_barrier")
    for k in range(3):
        for w in range(4):
            a(f"ds_read_b32 v{32+4*k+w}, v7 offset:{3072*w + 1024*k}")
    a("s_waitcnt lgkmcnt(0)")
    for k in range(3):
        b = 32 + 4*k
        a(f"v_add_f32 v{b}, v{b}, v{b+1}")
        a(f"v_add_f32 v{b+2}, v{b+2}, v{b+3}")
        a(f"v_add_f32 v{b}, v{b}, v{b+2}")
        a(f"v_add_f32 v{b}, v{b}, v{b}")
    for k in range(3):
        a(f"ds_write_b32 v{120+k}, v{32+4*k} offset:{FT}")
    a("s_waitcnt lgkmcnt(0)")
    a("s_barrier")
    for e in range(8):
        a(f"ds_read_b32 v{32+e}, v{112+e} offset:{FT}")
    a(f"""
    s_mul_i32 s3, s2, {KR_STRIDE}
    s_add_u32 s3, s3, {WS_KR}
    v_lshlrev_b32 v6, 4, v0
    v_mov_b32 v68, 0
    v_mov_b32 v69, 0
    v_mov_b32 v70, 0
    v_mov_b32 v71, 0
    s_waitcnt lgkmcnt(0)
    """)
    for e in range(0, 8, 2):
        a(f"v_cvt_pk_bf16_f32 v{64+e//2}, v{32+e}, v{33+e}")
    a("buffer_store_dwordx4 v[64:67], v6, s[32:35], s3 offen")
    trace_rt(a, 1, 0)
    a(f"""
    v_cmp_gt_u32 vcc, 8, v0
    s_and_saveexec_b64 s[62:63], vcc
    s_cbranch_execz {name}_end
    v_add_u32 v6, 4096, v6
    buffer_store_dwordx4 v[68:71], v6, s[32:35], s3 offen
    s_branch {name}_end
    """)
    a.label(f"{name}_ln")
    a("s_setprio 3")
    srd(a, 36, 4, 2097152)
    R = 4
    a("s_sub_u32 s3, s2, 512")
    a("""
    v_and_b32 v1, 63, v0
    v_lshrrev_b32 v4, 6, v0       ; w
    v_lshlrev_b32 v5, 12, v4      ; w*4 rows*1024
    v_lshl_add_u32 v5, v1, 4, v5
    s_lshl_b32 s40, s3, 14        ; b*16 rows*1024
    """)
    for rr in range(R):
        a(f"buffer_load_dwordx4 v[{8+4*rr}:{11+4*rr}], v5, s[36:39], s40 offen offset:{1024*rr}")
    a("""
    v_mul_u32_u24 v40, 4352, v4
    v_lshl_add_u32 v40, v1, 4, v40
    """)
    for rr in range(R):
        a(f"s_waitcnt vmcnt({R-1-rr})")
        a(f"ds_write_b128 v40, v[{8+4*rr}:{11+4*rr}] offset:{1088*rr}")
        for e in range(8):
            unpack(a, 64+8*rr+e, 8+4*rr, e)
        b = 64 + 8*rr
        a(f"v_add_f32 v{48+rr}, v{b}, v{b+1}")
        a(f"v_add_f32 v{52+rr}, v{b+2}, v{b+3}")
        a(f"v_add_f32 v{48+rr}, v{48+rr}, v{b+4}")
        a(f"v_add_f32 v{52+rr}, v{52+rr}, v{b+5}")
        a(f"v_add_f32 v{48+rr}, v{48+rr}, v{b+6}")
        a(f"v_add_f32 v{52+rr}, v{52+rr}, v{b+7}")
        a(f"v_add_f32 v{48+rr}, v{48+rr}, v{52+rr}")
    def wave_reduce(base):
        a("s_nop 1")
        for rr in range(R): a(f"v_add_f32_dpp v{56+rr}, v{base+rr}, v{base+rr} quad_perm:[1,0,3,2] row_mask:0xf bank_mask:0xf")
        for rr in range(R): a(f"v_add_f32_dpp v{base+rr}, v{56+rr}, v{56+rr} quad_perm:[2,3,0,1] row_mask:0xf bank_mask:0xf")
        for rr in range(R): a(f"v_add_f32_dpp v{56+rr}, v{base+rr}, v{base+rr} row_half_mirror row_mask:0xf bank_mask:0xf")
        for rr in range(R): a(f"v_add_f32_dpp v{base+rr}, v{56+rr}, v{56+rr} row_mirror row_mask:0xf bank_mask:0xf")
        for rr in range(R): a(f"v_mov_b32 v{56+rr}, v{base+rr}")
        a("s_nop 0")
        for rr in range(R): a(f"v_permlane16_swap_b32 v{56+rr}, v{base+rr}")
        for rr in range(R): a(f"v_add_f32 v{base+rr}, v{base+rr}, v{56+rr}")
        for rr in range(R): a(f"v_mov_b32 v{56+rr}, v{base+rr}")
        a("s_nop 0")
        for rr in range(R): a(f"v_permlane32_swap_b32 v{56+rr}, v{base+rr}")
        for rr in range(R): a(f"v_add_f32 v{base+rr}, v{base+rr}, v{56+rr}")
    wave_reduce(48)
    for rr in range(R):
        a(f"v_mul_f32 v{48+rr}, 0x3b000000, v{48+rr}")
    for rr in range(R):
        for e in range(8):
            a(f"v_sub_f32 v{64+8*rr+e}, v{64+8*rr+e}, v{48+rr}")
    for rr in range(R):
        a(f"v_mul_f32 v{52+rr}, v{64+8*rr}, v{64+8*rr}")
    for e in range(1, 8):
        for rr in range(R):
            a(f"v_fmac_f32 v{52+rr}, v{64+8*rr+e}, v{64+8*rr+e}")
    wave_reduce(52)
    a("v_mov_b32 v72, v48")
    a("v_mov_b32 v73, v52")
    for rr in range(1, R):
        a(f"v_cmp_eq_u32 vcc, {rr}, v1")
        a("s_nop 1")
        a(f"v_cndmask_b32 v72, v72, v{48+rr}, vcc")
        a(f"v_cndmask_b32 v73, v73, v{52+rr}, vcc")
    a(f"""
    v_lshl_add_u32 v74, v4, 2, v1     ; 4w + lane
    v_lshlrev_b32 v74, 2, v74
    s_lshl_b32 s41, s3, 6             ; b*16*4
    s_add_u32 s41, s41, {WS_ST1}
    v_mov_b32 v75, 0
    v_cmp_gt_u32 vcc, {R}, v1
    s_and_saveexec_b64 s[62:63], vcc
    buffer_store_dword v72, v74, s[32:35], s41 offen
    s_add_u32 s42, s41, 8192
    buffer_store_dword v75, v74, s[32:35], s42 offen
    s_add_u32 s42, s41, 16384
    buffer_store_dword v73, v74, s[32:35], s42 offen
    s_mov_b64 exec, s[62:63]
    s_waitcnt lgkmcnt(0)
    s_barrier
    """)
    a("""
    v_lshrrev_b32 v6, 4, v1
    v_lshrrev_b32 v7, 2, v1
    v_and_b32 v7, 3, v7
    v_and_b32 v28, 3, v1
    v_mul_u32_u24 v7, 1088, v7
    v_lshl_add_u32 v7, v6, 5, v7
    v_lshl_add_u32 v7, v28, 3, v7
    v_lshl_add_u32 v7, v4, 8, v7      ; + w*256 bytes
    """)
    for st in range(2):
        for g in range(4):
            a(f"ds_read_b64_tr_b16 v[{8+8*st+2*g}:{9+8*st+2*g}], v7 offset:{128*st + 4352*g}")
    a(f"""
    v_lshl_add_u32 v6, v4, 7, v1
    v_lshlrev_b32 v6, 12, v6
    s_lshl_b32 s41, s3, 5
    s_add_u32 s41, s41, {WS_XT0}
    s_add_u32 s42, s41, {64*4096}
    s_waitcnt lgkmcnt(0)
    """)
    for st in range(2):
        for k in range(2):
            a(f"buffer_store_dwordx4 v[{8+8*st+4*k}:{11+8*st+4*k}], v6, s[32:35], s{41+st} offen offset:{16*k}")
    trace_rt(a, 1, 0)
    a(f"s_branch {name}_end")
    a.label(f"{name}_colsum")
    a("s_setprio 3")
    srd(a, 36, 20, D*DFF*2)
    a(f"""
    s_sub_u32 s3, s2, {512+NLN}
    v_and_b32 v1, 7, v0           ; cg
    v_lshrrev_b32 v2, 3, v0       ; rg
    v_mul_u32_u24 v5, 57344, v2   ; rg*16*3584
    v_lshl_add_u32 v5, v1, 4, v5
    s_lshl_b32 s40, s3, 7
    """)
    for rr in range(16):
        a(f"buffer_load_dwordx4 v[{8+4*rr}:{11+4*rr}], v5, s[36:39], s40 offen")
        a("s_add_u32 s40, s40, 3584")
    for e in range(8):
        a(f"v_mov_b32 v{80+e}, 0")
    for rr in range(16):
        a(f"s_waitcnt vmcnt({15-rr})")
        for e in range(8):
            unpack(a, 72, 8+4*rr, e)
            a(f"v_add_f32 v{80+e}, v{80+e}, v72")
    a("""
    v_lshlrev_b32 v6, 5, v0
    ds_write_b128 v6, v[80:83]
    ds_write_b128 v6, v[84:87] offset:16
    s_waitcnt lgkmcnt(0)
    s_barrier
    v_cmp_gt_u32 vcc, 64, v0
    s_and_saveexec_b64 s[62:63], vcc
    """)
    a(f"s_cbranch_execz {name}_end")
    a("v_lshlrev_b32 v6, 2, v0")
    for k in range(32):
        a(f"ds_read_b32 v{8+k}, v6 offset:{256*k}")
    a("s_waitcnt lgkmcnt(0)")
    for k in range(1, 32):
        a(f"v_add_f32 v8, v8, v{8+k}")
    a(f"""
    s_lshl_b32 s41, s3, 8
    s_add_u32 s41, s41, {WS_CS}
    buffer_store_dword v8, v6, s[32:35], s41 offen
    """)
    trace_rt(a, 1, 0)
    a.label(f"{name}_end")
    a("s_endpgm")
    return 128
```

```python
import sys, os
import common
common.STAMP = bool(int(os.environ.get('STAMP','0')))
from common import *
from prep import gen_prep, NPREP, PREP_LDS
from conv import gen_conv, CONV_LDS, CONV_THREADS, CONVK_LDS
from gemm1 import gen_gemm1, G1_LDS
from gemm2 import gen_gemm2, G2_LDS

HEADER = open("interleave_layers__ssm_conv_s4d__dense_activation_relu__prompt.s.ref").read().split("; Override launch")[0]

def main(out):
    a = Asm()
    descs = []
    common.SV = 125
    v = gen_prep(a, "prep_kernel"); common.SV = 253; descs.append(("prep_kernel", v))
    common.SV = 13
    common.KIDX = 1
    v = gen_conv(a, "conv1_kernel", WS_XT0, WS_XT1, WS_ST1); descs.append(("conv1_kernel", v))
    common.SV = 164
    common.KIDX = 2
    v = gen_gemm1(a, "gemm1a_kernel", WS_XT1, True); v = 168; common.SV = 253; descs.append(("gemm1a_kernel", v))
    common.SV = 132
    common.KIDX = 3
    v = gen_gemm2(a, "gemm2a_kernel", WS_XT1, WS_XT2, False); v = 136; descs.append(("gemm2a_kernel", v))
    common.SV = 13
    common.KIDX = 4
    v = gen_conv(a, "conv2_kernel", WS_XT2, WS_XT3, WS_ST3); descs.append(("conv2_kernel", v))
    common.SV = 164
    common.KIDX = 5
    v = gen_gemm1(a, "gemm1b_kernel", WS_XT3, False); v = 168; common.SV = 253; descs.append(("gemm1b_kernel", v))
    common.SV = 132
    common.KIDX = 6
    v = gen_gemm2(a, "gemm2b_kernel", WS_XT3, None, True); v = 136; descs.append(("gemm2b_kernel", v))
    launches = [
        ("prep_kernel", NPREP, 256, PREP_LDS),
        ("conv1_kernel", 512, CONV_THREADS, CONV_LDS),
        ("gemm1a_kernel", 224, 768, G1_LDS),
        ("gemm2a_kernel", 256, 512, G2_LDS),
        ("conv2_kernel", 512, CONV_THREADS, CONV_LDS),
        ("gemm1b_kernel", 224, 768, G1_LDS),
        ("gemm2b_kernel", 256, 512, G2_LDS),
    ]
    s = HEADER
    for k, g, b, l in launches:
        s += f"; @launch kernel={k} grid=({g},1,1) block=({b},1,1) lds={l}\n"
    s += '.amdgcn_target "amdgcn-amd-amdhsa--gfx950"\n'
    s += a.text()
    for k, v in descs:
        s += kernel_desc(k, v)
    open(out, "w").write(s)

if __name__ == "__main__":
    main(sys.argv[1] if len(sys.argv) > 1 else "interleave_layers__ssm_conv_s4d__dense_activation_relu__prompt.s")
```

```python
from common import *
import common, os
from prep import load_ptrs, unpack

KB = 0
KCS = 4160
UB = 16640
PBS = 9216
NW = 8
NMW = 4
CONV_LDS = PBS * NMW
CONV_THREADS = 64 * NW
STF = " sc0 sc1"

def bf16r_pair(a, pk, x0, x1, d0, d1):
    a(f"v_cvt_pk_bf16_f32 v{pk}, v{x0}, v{x1}")
    a(f"v_lshlrev_b32 v{d0}, 16, v{pk}")
    a(f"v_and_b32 v{d1}, 0xffff0000, v{pk}")

PT = 24320
FT = PT + 8*3072
CONVK_LDS = FT + 9792
LOG2E = "0x3fb8aa3b"
INV2PI = "0x3e22f983"

def gen_conv(a, name, xt_in, xt_out, st, fuse=False):
    kernel_begin(a, name)
    load_ptrs(a)
    a("s_cmp_ge_u32 s2, 512")
    a(f"s_cbranch_scc1 {name}_end")
    a(f"""
    v_lshlrev_b32 v1, 4, v0            ; 16 t
    v_lshlrev_b32 v2, 3, v0            ; 8 t
    v_lshrrev_b32 v45, 6, v0           ; w
    s_lshl_b32 s3, s2, 12
    s_add_u32 s36, s3, {xt_in}
    s_add_u32 s37, s3, {xt_out}
    s_mul_i32 s38, s2, {KR_STRIDE}
    s_add_u32 s38, s38, {WS_KR}
    s_mov_b32 s39, {st}
    s_mov_b32 s40, {st + 8192}
    s_mov_b32 s41, {st + 16384}
    v_readfirstlane_b32 s46, v45
    s_waitcnt lgkmcnt(0)
    """)
    srd(a, 32, 28, WS_SIZE)
    stamp_init(a); stamp(a, 0); stamp_rt(a, 40); trace_rt(a, 0, common.KIDX)
    if fuse:
        srd(a, 48, 6, 131072)
        srd(a, 52, 8, 131072)
        srd(a, 56, 10, 131072)
        srd(a, 60, 12, 131072)
        a(f"""
        v_and_b32 v44, 63, v0
        v_and_b32 v60, 15, v0         ; i
        v_lshrrev_b32 v61, 4, v44     ; kq
        v_lshlrev_b32 v63, 5, v45     ; w*32 bytes
        v_lshl_add_u32 v63, v61, 3, v63
        s_lshl_b32 s3, s2, 8          ; d*256 bytes
        buffer_load_dwordx2 v[64:65], v63, s[48:51], s3 offen
        buffer_load_dwordx2 v[66:67], v63, s[52:55], s3 offen
        buffer_load_dwordx2 v[68:69], v63, s[56:59], s3 offen
        buffer_load_dwordx2 v[70:71], v63, s[60:63], s3 offen
        s_lshr_b32 s3, s2, 1
        s_lshl_b32 s3, s3, 2
        s_add_u32 s14, s14, s3
        s_addc_u32 s15, s15, 0
        s_load_dword s47, s[14:15], 0
        """)
    a(f"""
    buffer_load_dwordx4 v[16:19], v1, s[32:35], s39 offen        ; piv
    buffer_load_dwordx4 v[20:23], v1, s[32:35], s40 offen        ; s1
    buffer_load_dwordx4 v[24:27], v1, s[32:35], s41 offen        ; s2
    buffer_load_dwordx2 v[4:5], v2, s[32:35], s36 offen          ; x
    s_lshr_b32 s3, s2, 1
    s_lshl_b32 s3, s3, 2
    s_add_u32 s16, s16, s3
    s_addc_u32 s17, s17, 0
    s_load_dword s42, s[16:17], 0
    v_mov_b32 v40, 0
    v_mov_b32 v41, 0
    v_mov_b32 v42, 0
    v_mov_b32 v43, 0
    """)
    def kcopies():
        a(f"""
        ds_write_b128 v1, v[8:11] offset:{KB}
        v_alignbyte_b32 v52, v9, v8, 2
        v_alignbyte_b32 v53, v10, v9, 2
        v_alignbyte_b32 v54, v11, v10, 2
        v_alignbyte_b32 v55, v12, v11, 2
        v_alignbyte_b32 v56, v13, v12, 2
        v_mov_b32 v60, v9
        v_mov_b32 v61, v10
        v_mov_b32 v62, v11
        v_mov_b32 v63, v12
        ds_write_b128 v1, v[52:55] offset:{KB + KCS}
        ds_write_b128 v1, v[60:63] offset:{KB + 2*KCS}
        v_mov_b32 v8, v53
        v_mov_b32 v9, v54
        v_mov_b32 v10, v55
        v_mov_b32 v11, v56
        ds_write_b128 v1, v[8:11] offset:{KB + 3*KCS}
        """)
    if not fuse:
        a(f"""
        s_cmp_ge_u32 s46, 4
        s_cbranch_scc1 {name}_hi
        buffer_load_dwordx4 v[8:11], v1, s[32:35], s38 offen         ; K chunk
        buffer_load_dwordx2 v[12:13], v1, s[32:35], s38 offen offset:16
        v_cmp_gt_u32 vcc, 4, v0
        s_and_saveexec_b64 s[44:45], vcc
        """)
        for s_ in range(4):
            a(f"ds_write_b128 v1, v[40:43] offset:{KB + KCS*s_ + 4096}")
        a("s_mov_b64 exec, s[44:45]")
        a("s_waitcnt vmcnt(0)")
        kcopies()
        a(f"s_branch {name}_join")
        a.label(f"{name}_hi")
        a(f"""
        v_cmp_gt_u32 vcc, 416, v0
        s_and_saveexec_b64 s[44:45], vcc
        ds_write_b128 v1, v[40:43] offset:{UB - 4096}
        s_mov_b64 exec, s[44:45]
        """)
    else:
        a(f"""
        v_cmp_gt_u32 vcc, 4, v0
        s_and_saveexec_b64 s[44:45], vcc
        """)
        for s_ in range(4):
            a(f"ds_write_b128 v1, v[40:43] offset:{KB + KCS*s_ + 4096}")
        a(f"""
        ds_write_b128 v1, v[40:43] offset:{FT + 9760 - 32}
        s_mov_b64 exec, s[44:45]
        v_subrev_u32 v63, 256, v0
        v_cmp_gt_u32 vcc, 160, v63
        s_and_saveexec_b64 s[44:45], vcc
        ds_write_b128 v1, v[40:43] offset:{UB - 4096}
        s_mov_b64 exec, s[44:45]
        """)
        a("""
        v_lshlrev_b32 v6, 3, v60
        v_cvt_f32_u32 v72, v6
        v_lshrrev_b32 v6, 3, v60
        v_lshlrev_b32 v6, 7, v6
        v_and_b32 v7, 7, v60
        v_add_u32 v6, v6, v7
        v_cvt_f32_u32 v73, v6
        v_cmp_gt_u32 vcc, 8, v60
        v_lshrrev_b32 v6, 2, v60
        v_lshlrev_b32 v6, 7, v6
        v_and_b32 v7, 3, v60
        v_lshl_add_u32 v6, v7, 1, v6
        v_add_u32 v6, 256, v6
        v_and_b32 v7, 7, v60
        v_lshrrev_b32 v63, 1, v7
        v_lshlrev_b32 v63, 7, v63
        v_and_b32 v7, 1, v7
        v_lshl_add_u32 v63, v7, 2, v63
        v_add_u32 v63, 512, v63
        v_cndmask_b32 v6, v63, v6, vcc
        v_cvt_f32_u32 v74, v6
        v_lshlrev_b32 v6, 7, v60
        v_add_u32 v6, 1024, v6
        v_mov_b32 v7, 2048
        v_cndmask_b32 v6, v7, v6, vcc
        v_cvt_f32_u32 v75, v6
        """)
        a(f"""
        v_and_b32 v10, 3, v45             ; r
        v_cmp_gt_u32 vcc, 2, v61          ; kq < 2
        s_cmp_ge_u32 s46, 4
        s_cbranch_scc1 {name}_pT1
        v_lshrrev_b32 v7, 1, v61
        v_lshlrev_b32 v7, 7, v7
        v_and_b32 v63, 1, v61
        v_lshl_add_u32 v7, v63, 2, v7
        v_add_u32 v7, v7, v10
        v_lshl_add_u32 v8, v60, 3, v7     ; pos T0
        v_lshl_add_u32 v7, v61, 2, v10
        v_lshlrev_b32 v7, 7, v7
        v_add_u32 v7, 1024, v7
        v_mov_b32 v63, 2048
        v_cndmask_b32 v7, v63, v7, vcc
        v_lshl_add_u32 v9, v60, 3, v7     ; pos T2
        v_lshrrev_b32 v7, 3, v9
        v_add_lshl_u32 v9, v9, v7, 2
        v_lshlrev_b32 v6, 3, v0
        v_sub_u32 v6, 2047, v6            ; j0 = 2047 - 8t
        """)
        for e in range(0, 12, 2):
            a(f"""
            v_subrev_u32 v7, {e}, v6
            v_subrev_u32 v63, {e+1}, v6
            v_max_i32 v11, 0, v7
            v_max_i32 v12, 0, v63
            v_cvt_f32_u32 v11, v11
            v_cvt_f32_u32 v12, v12
            v_cvt_pk_bf16_f32 v11, v11, v12
            v_and_b32 v12, 0xffff0000, v11
            v_lshlrev_b32 v11, 16, v11
            v_cvt_u32_f32 v11, v11
            v_cvt_u32_f32 v12, v12
            v_lshrrev_b32 v13, 3, v11
            v_lshrrev_b32 v14, 3, v12
            v_add_lshl_u32 v{116+e}, v11, v13, 2
            v_add_lshl_u32 v{117+e}, v12, v14, 2
            """)
            if e >= 8:
                a(f"""
                v_mov_b32 v11, 9760
                v_cmp_gt_i32 vcc, 0, v7
                s_nop 1
                v_cndmask_b32 v{116+e}, v{116+e}, v11, vcc
                v_cmp_gt_i32 vcc, 0, v63
                s_nop 1
                v_cndmask_b32 v{117+e}, v{117+e}, v11, vcc
                """)
        a(f"s_branch {name}_pdone")
        a.label(f"{name}_pT1")
        a("""
        v_lshlrev_b32 v7, 7, v61
        v_lshl_add_u32 v7, v10, 1, v7
        v_add_u32 v7, 256, v7
        v_lshlrev_b32 v63, 8, v61
        v_lshrrev_b32 v11, 1, v10
        v_lshl_add_u32 v63, v11, 7, v63
        v_and_b32 v11, 1, v10
        v_lshl_add_u32 v63, v11, 2, v63
        v_cndmask_b32 v7, v63, v7, vcc
        v_lshl_add_u32 v8, v60, 3, v7     ; pos T1
        """)
        a.label(f"{name}_pdone")
        a(f"""
        v_lshrrev_b32 v7, 3, v8
        v_add_lshl_u32 v8, v8, v7, 2
        s_waitcnt lgkmcnt(0)
        s_and_b32 s43, s2, 1
        s_lshl_b32 s43, s43, 4
        s_lshr_b32 s47, s47, s43
        s_lshl_b32 s47, s47, 16
        v_mov_b32 v6, s47
        v_mul_f32 v6, {LOG2E}, v6
        v_exp_f32 v6, v6
        s_nop 0
        v_cvt_pk_bf16_f32 v6, v6, v6
        v_lshlrev_b32 v62, 16, v6     ; dt
        """)
        for r in range(12):
            a(f"v_mov_b32 v{104+r}, 0")
        a("s_waitcnt vmcnt(4)")
        P = [72, 73, 74, 75]
        for sm in range(4):
            unpack(a, 80, 64, sm)
            unpack(a, 81, 66, sm)
            unpack(a, 82, 68, sm)
            unpack(a, 83, 70, sm)
            a(f"""
            v_mul_f32 v80, {LOG2E}, v80
            v_exp_f32 v80, v80
            v_mul_f32 v81, v81, v62
            v_cvt_pk_bf16_f32 v80, v80, v80
            v_lshlrev_b32 v80, 16, v80
            v_mul_f32 v80, v80, v62
            v_mul_f32 v76, 0xbfb8aa3b, v80
            v_mul_f32 v77, {INV2PI}, v81
            v_mul_f32 v78, v82, v62
            v_mul_f32 v79, v83, v62
            """)
            for u in range(4): a(f"v_mul_f32 v{80+u}, v76, v{P[u]}")
            for u in range(4): a(f"v_mul_f32 v{84+u}, v77, v{P[u]}")
            for u in range(4): a(f"v_exp_f32 v{88+u}, v{80+u}")
            for u in range(4): a(f"v_fract_f32 v{84+u}, v{84+u}")
            for u in range(4): a(f"v_cos_f32 v{92+u}, v{84+u}")
            for u in range(4): a(f"v_sin_f32 v{96+u}, v{84+u}")
            for u in range(4): a(f"v_mul_f32 v{92+u}, v{88+u}, v{92+u}")
            for u in range(4): a(f"v_mul_f32 v{96+u}, v{88+u}, v{96+u}")
            a("""
            v_mul_f32 v100, v78, v92
            v_mul_f32 v101, v78, v96
            v_fma_f32 v100, -v79, v96, v100
            v_fma_f32 v101, -v79, v92, -v101
            s_nop 1
            """)
            for T in range(3): a(f"v_mfma_f32_16x16x4_f32 v[{104+4*T}:{107+4*T}], v{93+T}, v100, v[{104+4*T}:{107+4*T}]")
            for T in range(3): a(f"v_mfma_f32_16x16x4_f32 v[{104+4*T}:{107+4*T}], v{97+T}, v101, v[{104+4*T}:{107+4*T}]")
        a(f"""
        v_mul_u32_u24 v6, 3072, v45
        v_lshl_add_u32 v6, v44, 2, v6
        v_and_b32 v7, 255, v0
        v_lshlrev_b32 v7, 2, v7
        v_lshrrev_b32 v63, 8, v0
        v_lshl_add_u32 v7, v63, 10, v7
        s_nop 7
        """)
        for r in range(12):
            a(f"ds_write_b32 v6, v{104+r} offset:{PT + 256*r}")
        a("s_waitcnt lgkmcnt(0)")
        a("s_barrier")
        for w in range(8):
            a(f"ds_read_b32 v{80+w}, v7 offset:{PT + 3072*w}")
        a(f"""
        s_cmp_ge_u32 s46, 4
        s_cbranch_scc1 {name}_r1
        """)
        for w in range(8):
            a(f"ds_read_b32 v{88+w}, v7 offset:{PT + 3072*w + 2048}")
        a("s_waitcnt lgkmcnt(0)")
        for b in (88,):
            a(f"""
            v_add_f32 v{b}, v{b}, v{b+1}
            v_add_f32 v{b+2}, v{b+2}, v{b+3}
            v_add_f32 v{b+4}, v{b+4}, v{b+5}
            v_add_f32 v{b+6}, v{b+6}, v{b+7}
            v_add_f32 v{b}, v{b}, v{b+2}
            v_add_f32 v{b+4}, v{b+4}, v{b+6}
            v_add_f32 v{b}, v{b}, v{b+4}
            v_add_f32 v{b}, v{b}, v{b}
            ds_write_b32 v9, v{b} offset:{FT}
            """)
        a.label(f"{name}_r1")
        a("s_waitcnt lgkmcnt(0)")
        b = 80
        a(f"""
        v_add_f32 v{b}, v{b}, v{b+1}
        v_add_f32 v{b+2}, v{b+2}, v{b+3}
        v_add_f32 v{b+4}, v{b+4}, v{b+5}
        v_add_f32 v{b+6}, v{b+6}, v{b+7}
        v_add_f32 v{b}, v{b}, v{b+2}
        v_add_f32 v{b+4}, v{b+4}, v{b+6}
        v_add_f32 v{b}, v{b}, v{b+4}
        v_add_f32 v{b}, v{b}, v{b}
        ds_write_b32 v8, v{b} offset:{FT}
        s_waitcnt lgkmcnt(0)
        s_barrier
        s_cmp_ge_u32 s46, 4
        s_cbranch_scc1 {name}_join
        """)
        for e in range(12):
            a(f"ds_read_b32 v{80+e}, v{116+e} offset:{FT}")
        a("s_waitcnt lgkmcnt(0)")
        for e in range(0, 12, 2):
            a(f"v_cvt_pk_bf16_f32 v{8+e//2}, v{80+e}, v{81+e}")
        a(f"""
        buffer_store_dwordx4 v[8:11], v1, s[32:35], s38 offen
        v_cmp_gt_u32 vcc, 8, v0
        s_and_saveexec_b64 s[44:45], vcc
        v_add_u32 v6, 4096, v1
        buffer_store_dwordx4 v[40:43], v6, s[32:35], s38 offen
        s_mov_b64 exec, s[44:45]
        """)
        kcopies()
    a.label(f"{name}_join")
    a(f"""
    v_and_b32 v44, 63, v0              ; lane
    v_and_b32 v46, 31, v44             ; i / a
    v_lshrrev_b32 v47, 5, v44          ; g
    v_and_b32 v48, 3, v46
    v_sub_u32 v48, 3, v48              ; s = 3 - (i&3)
    v_mul_u32_u24 v48, {KCS}, v48
    v_lshrrev_b32 v49, 2, v46
    v_lshlrev_b32 v49, 3, v49          ; 2*4*(i>>2)
    v_sub_u32 v48, v48, v49
    v_lshl_add_u32 v48, v47, 4, v48    ; + 2*8g
    v_lshlrev_b32 v49, 9, v45          ; 2*32*8*w
    v_sub_u32 v48, v48, v49
    v_add_u32 v48, {KB + 2*(2044 - 32*39)}, v48     ; vA
    v_lshlrev_b32 v49, 3, v45
    v_sub_u32 v49, v46, v49            ; a - 8w
    v_add_u32 v49, 25, v49             ; 32 + a - 8w - 7
    v_mul_u32_u24 v49, 80, v49
    v_lshl_add_u32 v49, v47, 4, v49
    v_add_u32 v49, {UB}, v49           ; vB
    v_lshrrev_b32 v50, 3, v0
    v_and_b32 v51, 7, v0
    v_mul_u32_u24 v57, 80, v50
    v_lshl_add_u32 v57, v51, 3, v57
    v_mul_u32_u24 v58, 144, v50
    v_lshl_add_u32 v58, v51, 4, v58
    v_mul_u32_u24 v59, {PBS}, v45
    v_mul_u32_u24 v50, 144, v46
    v_add_u32 v59, v59, v50
    v_lshl_add_u32 v59, v47, 4, v59
    """)
    for r in range(32):
        a(f"v_mov_b32 v{64+r}, 0")
    a("s_waitcnt vmcnt(0)" if fuse else "s_waitcnt vmcnt(1)")
    stamp(a, 1)
    for e in range(4):
        a(f"v_mul_f32 v{20+e}, 0x3b000000, v{20+e}")
        a(f"v_mul_f32 v{24+e}, 0x3b000000, v{24+e}")
        a(f"v_add_f32 v{16+e}, v{16+e}, v{20+e}")
        a(f"v_fma_f32 v{24+e}, -v{20+e}, v{20+e}, v{24+e}")
        a(f"v_max_f32 v{24+e}, 0, v{24+e}")
    for e in range(0, 4, 2):
        bf16r_pair(a, 50, 16+e, 17+e, 16+e, 17+e)
        bf16r_pair(a, 51, 24+e, 25+e, 24+e, 25+e)
    for e in range(4):
        a(f"v_add_f32 v{24+e}, 0x3727c5ac, v{24+e}")
    for e in range(0, 4, 2):
        bf16r_pair(a, 51, 24+e, 25+e, 24+e, 25+e)
    for e in range(4):
        a(f"v_sqrt_f32 v{20+e}, v{24+e}")
    a("s_nop 0")
    for e in range(0, 4, 2):
        bf16r_pair(a, 51, 20+e, 21+e, 20+e, 21+e)
    for e in range(4):
        a(f"v_rcp_f32 v{24+e}, v{20+e}")
    a("s_waitcnt vmcnt(0)")
    for e in range(4):
        unpack(a, 28+e, 4, e)
    for e in range(4):
        a(f"v_sub_f32 v{32+e}, v{28+e}, v{16+e}")
    for e in range(0, 4, 2):
        bf16r_pair(a, 50, 32+e, 33+e, 32+e, 33+e)
    for e in range(4):
        a(f"v_mul_f32 v{36+e}, v{32+e}, v{24+e}")
    for e in range(4):
        a(f"v_fma_f32 v{32+e}, -v{36+e}, v{20+e}, v{32+e}")
    for e in range(4):
        a(f"v_fmac_f32 v{36+e}, v{32+e}, v{24+e}")
    for e in range(0, 4, 2):
        bf16r_pair(a, 6+e//2, 36+e, 37+e, 36+e, 37+e)
    a(f"ds_write_b64 v57, v[6:7] offset:{UB + 2560}")
    stamp(a, 2)
    a("s_waitcnt lgkmcnt(0)")
    a("s_barrier")
    stamp(a, 3)
    steps = [(cc, h) for cc in range(8) for h in range(2)]
    NS = len(steps)
    def rd(n, which):
        cc, h = steps[n]
        b = 96 + 16*(n & 1)
        oa = 2*(32*(7-cc) + 16*h)
        ob = 80*(7-cc) + 32*h
        if which == 0:
            a(f"ds_read_b64 v[{b}:{b+1}], v48 offset:{oa + 2048}")
            a(f"ds_read_b64 v[{b+2}:{b+3}], v48 offset:{oa + 2048 + 8}")
            a(f"ds_read_b128 v[{b+12}:{b+15}], v49 offset:{ob + 2560}")
        elif which == 1:
            a(f"ds_read_b128 v[{b+8}:{b+11}], v49 offset:{ob}")
        else:
            a(f"ds_read_b64 v[{b+4}:{b+5}], v48 offset:{oa}")
            a(f"ds_read_b64 v[{b+6}:{b+7}], v48 offset:{oa + 8}")
    a("s_cmp_ge_u32 s46, 4")
    a(f"s_cbranch_scc1 {name}_skipmain")
    rd(0, 0); rd(0, 1); rd(0, 2)
    for n in range(NS):
        last = n == NS - 1
        b = 96 + 16*(n & 1)
        a("s_waitcnt lgkmcnt(3)")
        a(f"v_mfma_f32_32x32x16_bf16 v[80:95], v[{b}:{b+3}], v[{b+12}:{b+15}], v[80:95]")
        if not last: rd(n+1, 0)
        a(f"s_waitcnt lgkmcnt({2 if last else 5})")
        a(f"v_mfma_f32_32x32x16_bf16 v[64:79], v[{b}:{b+3}], v[{b+8}:{b+11}], v[64:79]")
        if not last: rd(n+1, 1)
        a(f"s_waitcnt lgkmcnt({0 if last else 4})")
        a(f"v_mfma_f32_32x32x16_bf16 v[80:95], v[{b+4}:{b+7}], v[{b+8}:{b+11}], v[80:95]")
        if not last: rd(n+1, 2)
    a.label(f"{name}_skipmain")
    a("""
    s_and_b32 s43, s2, 1
    s_lshl_b32 s43, s43, 4
    s_lshr_b32 s42, s42, s43
    s_lshl_b32 s42, s42, 16
    """)
    for e in range(4):
        a(f"v_mul_f32 v{32+e}, s42, v{36+e}")
    for e in range(0, 4, 2):
        bf16r_pair(a, 50, 32+e, 33+e, 32+e, 33+e)
    a("s_barrier")
    stamp(a, 4)
    a("s_cmp_ge_u32 s46, 4")
    a(f"s_cbranch_scc1 {name}_skipw")
    a("s_nop 3")
    for T in range(2):
        for q in range(4):
            a(f"ds_write_b128 v59, v[{64+16*T+4*q}:{67+16*T+4*q}] offset:{144*32*T + 32*q}")
    a("s_waitcnt lgkmcnt(0)")
    a.label(f"{name}_skipw")
    a("s_barrier")
    for w in range(NMW):
        a(f"ds_read_b128 v[{96+4*w}:{99+4*w}], v58 offset:{PBS*w}")
    for w in range(0, NMW, 2):
        a(f"s_waitcnt lgkmcnt({NMW-2-w})")
        for e in range(4):
            a(f"v_add_f32 v{96+4*w+e}, v{96+4*w+e}, v{100+4*w+e}")
    for e in range(4):
        a(f"v_add_f32 v{96+e}, v{96+e}, v{104+e}")
    for e in range(0, 4, 2):
        bf16r_pair(a, 50, 96+e, 97+e, 96+e, 97+e)
    for e in range(4):
        a(f"v_add_f32 v{96+e}, v{96+e}, v{32+e}")
    for e in range(0, 4, 2):
        bf16r_pair(a, 50, 96+e, 97+e, 96+e, 97+e)
    for e in range(4):
        a(f"v_add_f32 v{96+e}, v{96+e}, v{28+e}")
    for e in range(0, 4, 2):
        a(f"v_cvt_pk_bf16_f32 v{100+e//2}, v{96+e}, v{97+e}")
    a("buffer_store_dwordx2 v[100:101], v2, s[32:35], s37 offen" + STF)
    stamp(a, 5)
    if common.STAMP:
        a("s_waitcnt vmcnt(0)")
    stamp(a, 6); stamp_rt(a, 42); trace_rt(a, 1, common.KIDX)
    a.label(f"{name}_end")
    a("s_endpgm")
    return 128
```

```python
from common import *
import common

import os
PST = os.environ.get("PST", " sc0 sc1")
LOG2E = "0x3fb8aa3b"
INV2PI = "0x3e22f983"
NLN = 128
NCS = 28
NPF = 28
NKG = 512
NCP = int(os.environ.get('NCP', '0'))
NPREP = NLN + NCS + NPF + NKG + NCP
PREP_LDS = 4 * 3072 + 9792 + 256

def load_ptrs(a):
    a("s_load_dwordx16 s[4:19], s[0:1], 0")
    a("s_load_dwordx8 s[20:27], s[0:1], 64")
    a("s_load_dwordx2 s[28:29], s[0:1], 96")

def unpack(a, dst, base, e):
    if e % 2 == 0:
        a(f"v_lshlrev_b32 v{dst}, 16, v{base + e//2}")
    else:
        a(f"v_and_b32 v{dst}, 0xffff0000, v{base + e//2}")

def gen_prep(a, name="prep_kernel"):
    kernel_begin(a, name)
    load_ptrs(a)
    a(f"s_cmp_ge_u32 s2, {NPREP}")
    a(f"s_cbranch_scc1 {name}_end")
    a("s_waitcnt lgkmcnt(0)")
    srd(a, 32, 28, WS_SIZE)
    stamp_init(a); trace_rt(a, 0, 0)
    if NCP:
        a(f"s_cmp_ge_u32 s2, {NKG+NLN+NCS+NPF}")
        a(f"s_cbranch_scc1 {name}_cpf")
    a(f"s_cmp_ge_u32 s2, {NKG+NLN+NCS}")
    a(f"s_cbranch_scc1 {name}_pf")
    a(f"s_cmp_ge_u32 s2, {NKG+NLN}")
    a(f"s_cbranch_scc1 {name}_colsum")
    a(f"s_cmp_ge_u32 s2, 512")
    a(f"s_cbranch_scc1 {name}_ln")
    srd(a, 36, 6, 131072)
    srd(a, 40, 8, 131072)
    srd(a, 44, 10, 131072)
    srd(a, 48, 12, 131072)
    a("""
    v_and_b32 v1, 63, v0
    v_and_b32 v2, 15, v0          ; i
    v_lshrrev_b32 v3, 4, v1       ; kq
    v_lshrrev_b32 v4, 6, v0       ; w
    v_lshlrev_b32 v5, 6, v4       ; w*64 bytes
    v_lshl_add_u32 v5, v3, 4, v5  ; + kq*16
    s_lshl_b32 s3, s2, 8          ; d*256 bytes
    buffer_load_dwordx4 v[8:11], v5, s[36:39], s3 offen
    buffer_load_dwordx4 v[12:15], v5, s[40:43], s3 offen
    buffer_load_dwordx4 v[16:19], v5, s[44:47], s3 offen
    buffer_load_dwordx4 v[20:23], v5, s[48:51], s3 offen
    s_lshr_b32 s3, s2, 1
    s_lshl_b32 s3, s3, 2
    s_add_u32 s14, s14, s3
    s_addc_u32 s15, s15, 0
    s_load_dword s60, s[14:15], 0
    """)
    a("""
    v_lshlrev_b32 v6, 3, v2
    v_cvt_f32_u32 v24, v6
    v_lshrrev_b32 v6, 3, v2
    v_lshlrev_b32 v6, 7, v6
    v_and_b32 v7, 7, v2
    v_add_u32 v6, v6, v7
    v_cvt_f32_u32 v25, v6
    v_cmp_gt_u32 vcc, 8, v2       ; i < 8
    v_lshrrev_b32 v6, 2, v2
    v_lshlrev_b32 v6, 7, v6
    v_and_b32 v7, 3, v2
    v_lshl_add_u32 v6, v7, 1, v6
    v_add_u32 v6, 256, v6         ; case i<8
    v_and_b32 v7, 7, v2           ; x = i-8 (when i>=8)
    v_lshrrev_b32 v28, 1, v7
    v_lshlrev_b32 v28, 7, v28
    v_and_b32 v7, 1, v7
    v_lshl_add_u32 v28, v7, 2, v28
    v_add_u32 v28, 512, v28
    v_cndmask_b32 v6, v28, v6, vcc
    v_cvt_f32_u32 v26, v6
    v_lshlrev_b32 v6, 7, v2
    v_add_u32 v6, 1024, v6
    v_mov_b32 v7, 2048
    v_cndmask_b32 v6, v7, v6, vcc
    v_cvt_f32_u32 v27, v6
    """)
    FT = 4 * 3072
    a("""
    v_lshlrev_b32 v6, 3, v0
    v_sub_u32 v6, 2047, v6        ; j0 = 2047 - 8t
    """)
    for e in range(0, 8, 2):
        a(f"""
        v_subrev_u32 v7, {e}, v6
        v_subrev_u32 v28, {e+1}, v6
        v_cvt_f32_u32 v7, v7
        v_cvt_f32_u32 v28, v28
        v_cvt_pk_bf16_f32 v7, v7, v28
        v_and_b32 v28, 0xffff0000, v7
        v_lshlrev_b32 v7, 16, v7
        v_cvt_u32_f32 v7, v7
        v_cvt_u32_f32 v28, v28
        v_lshrrev_b32 v30, 3, v7
        v_lshrrev_b32 v31, 3, v28
        v_add_lshl_u32 v{112+e}, v7, v30, 2
        v_add_lshl_u32 v{113+e}, v28, v31, 2
        """)
    a(f"""
    v_cmp_gt_u32 vcc, 2, v3           ; kq < 2
    v_lshrrev_b32 v7, 1, v3
    v_lshlrev_b32 v7, 7, v7           ; 128*(kq>>1)
    v_and_b32 v28, 1, v3
    v_lshl_add_u32 v7, v28, 2, v7     ; + 4*(kq&1)
    v_add_u32 v7, v7, v4              ; + r
    v_lshl_add_u32 v120, v2, 3, v7    ; pos T0
    v_lshlrev_b32 v7, 7, v3           ; 128 kq
    v_lshl_add_u32 v7, v4, 1, v7      ; + 2r
    v_add_u32 v7, 256, v7             ; case a
    v_lshlrev_b32 v28, 8, v3
    v_lshrrev_b32 v30, 1, v4
    v_lshl_add_u32 v28, v30, 7, v28   ; + 128 (r>>1)
    v_and_b32 v30, 1, v4
    v_lshl_add_u32 v28, v30, 2, v28   ; + 4 (r&1)
    v_cndmask_b32 v7, v28, v7, vcc
    v_lshl_add_u32 v121, v2, 3, v7    ; pos T1
    v_lshl_add_u32 v7, v3, 2, v4      ; 4kq + r
    v_lshlrev_b32 v7, 7, v7
    v_add_u32 v7, 1024, v7
    v_mov_b32 v28, 2048
    v_cndmask_b32 v7, v28, v7, vcc
    v_lshl_add_u32 v122, v2, 3, v7    ; pos T2
    """)
    for k in range(3):
        a(f"v_lshrrev_b32 v7, 3, v{120+k}")
        a(f"v_add_lshl_u32 v{120+k}, v{120+k}, v7, 2")
    a("s_waitcnt lgkmcnt(0)")
    a("""
    s_and_b32 s61, s2, 1
    s_lshl_b32 s61, s61, 4
    s_lshr_b32 s60, s60, s61
    s_lshl_b32 s60, s60, 16
    v_mov_b32 v6, s60
    v_mul_f32 v6, %s, v6
    v_exp_f32 v6, v6
    s_nop 0
    v_cvt_pk_bf16_f32 v6, v6, v6
    v_lshlrev_b32 v29, 16, v6     ; v29 = dt
    """ % LOG2E)
    for r in range(12):
        a(f"v_mov_b32 v{100+r}, 0")
    a("s_waitcnt vmcnt(0)")
    P = [24, 25, 26, 27]
    for s in range(8):
        unpack(a, 64, 8, s)
        unpack(a, 65, 12, s)
        unpack(a, 66, 16, s)
        unpack(a, 67, 20, s)
        a(f"""
        v_mul_f32 v64, {LOG2E}, v64
        v_exp_f32 v64, v64
        v_mul_f32 v65, v65, v29
        v_cvt_pk_bf16_f32 v64, v64, v64
        v_lshlrev_b32 v64, 16, v64
        v_mul_f32 v64, v64, v29
        v_mul_f32 v32, 0xbfb8aa3b, v64
        v_mul_f32 v33, {INV2PI}, v65
        v_mul_f32 v34, v66, v29
        v_mul_f32 v35, v67, v29
        """)
        for u in range(4): a(f"v_mul_f32 v{64+u}, v32, v{P[u]}")
        for u in range(4): a(f"v_mul_f32 v{68+u}, v33, v{P[u]}")
        for u in range(4): a(f"v_exp_f32 v{72+u}, v{64+u}")
        for u in range(4): a(f"v_fract_f32 v{68+u}, v{68+u}")
        for u in range(4): a(f"v_cos_f32 v{76+u}, v{68+u}")
        for u in range(4): a(f"v_sin_f32 v{80+u}, v{68+u}")
        for u in range(4): a(f"v_mul_f32 v{76+u}, v{72+u}, v{76+u}")
        for u in range(4): a(f"v_mul_f32 v{80+u}, v{72+u}, v{80+u}")
        a("""
        v_mul_f32 v84, v34, v76
        v_mul_f32 v85, v34, v80
        v_fma_f32 v84, -v35, v80, v84
        v_fma_f32 v85, -v35, v76, -v85
        s_nop 1
        """)
        for T in range(3): a(f"v_mfma_f32_16x16x4_f32 v[{100+4*T}:{103+4*T}], v{77+T}, v84, v[{100+4*T}:{103+4*T}]")
        for T in range(3): a(f"v_mfma_f32_16x16x4_f32 v[{100+4*T}:{103+4*T}], v{81+T}, v85, v[{100+4*T}:{103+4*T}]")
    a("""
    v_mul_u32_u24 v6, 3072, v4
    v_lshl_add_u32 v6, v1, 2, v6
    v_lshlrev_b32 v7, 2, v0           ; t*4  (= r*256 + lane*4)
    s_nop 7
    s_nop 1
    """)
    for r in range(12):
        a(f"ds_write_b32 v6, v{100+r} offset:{256*r}")
    a("s_waitcnt lgkmcnt(0)")
    a("s_barrier")
    for k in range(3):
        for w in range(4):
            a(f"ds_read_b32 v{32+4*k+w}, v7 offset:{3072*w + 1024*k}")
    a("s_waitcnt lgkmcnt(0)")
    for k in range(3):
        b = 32 + 4*k
        a(f"v_add_f32 v{b}, v{b}, v{b+1}")
        a(f"v_add_f32 v{b+2}, v{b+2}, v{b+3}")
        a(f"v_add_f32 v{b}, v{b}, v{b+2}")
        a(f"v_add_f32 v{b}, v{b}, v{b}")
    for k in range(3):
        a(f"ds_write_b32 v{120+k}, v{32+4*k} offset:{FT}")
    a("s_waitcnt lgkmcnt(0)")
    a("s_barrier")
    for e in range(8):
        a(f"ds_read_b32 v{32+e}, v{112+e} offset:{FT}")
    a(f"""
    s_mul_i32 s3, s2, {KR_STRIDE}
    s_add_u32 s3, s3, {WS_KR}
    v_lshlrev_b32 v6, 4, v0
    v_mov_b32 v68, 0
    v_mov_b32 v69, 0
    v_mov_b32 v70, 0
    v_mov_b32 v71, 0
    s_waitcnt lgkmcnt(0)
    """)
    for e in range(0, 8, 2):
        a(f"v_cvt_pk_bf16_f32 v{64+e//2}, v{32+e}, v{33+e}")
    a("buffer_store_dwordx4 v[64:67], v6, s[32:35], s3 offen" + PST)
    trace_rt(a, 1, 0)
    a(f"""
    v_cmp_gt_u32 vcc, 8, v0
    s_and_saveexec_b64 s[62:63], vcc
    s_cbranch_execz {name}_end
    v_add_u32 v6, 4096, v6
    buffer_store_dwordx4 v[68:71], v6, s[32:35], s3 offen
    s_branch {name}_end
    """)
    a.label(f"{name}_ln")
    a("s_setprio 3")
    srd(a, 36, 4, 2097152)
    R = 4
    a("s_sub_u32 s3, s2, 512")
    a("""
    v_and_b32 v1, 63, v0
    v_lshrrev_b32 v4, 6, v0       ; w
    v_lshlrev_b32 v5, 12, v4      ; w*4 rows*1024
    v_lshl_add_u32 v5, v1, 4, v5
    s_lshl_b32 s40, s3, 14        ; b*16 rows*1024
    """)
    for rr in range(R):
        a(f"buffer_load_dwordx4 v[{8+4*rr}:{11+4*rr}], v5, s[36:39], s40 offen offset:{1024*rr}")
    a("""
    v_mul_u32_u24 v40, 4352, v4
    v_lshl_add_u32 v40, v1, 4, v40
    """)
    for rr in range(R):
        a(f"s_waitcnt vmcnt({R-1-rr})")
        a(f"ds_write_b128 v40, v[{8+4*rr}:{11+4*rr}] offset:{1088*rr}")
        for e in range(8):
            unpack(a, 64+8*rr+e, 8+4*rr, e)
        b = 64 + 8*rr
        a(f"v_add_f32 v{48+rr}, v{b}, v{b+1}")
        a(f"v_add_f32 v{52+rr}, v{b+2}, v{b+3}")
        a(f"v_add_f32 v{48+rr}, v{48+rr}, v{b+4}")
        a(f"v_add_f32 v{52+rr}, v{52+rr}, v{b+5}")
        a(f"v_add_f32 v{48+rr}, v{48+rr}, v{b+6}")
        a(f"v_add_f32 v{52+rr}, v{52+rr}, v{b+7}")
        a(f"v_add_f32 v{48+rr}, v{48+rr}, v{52+rr}")
    def wave_reduce(base):
        a("s_nop 1")
        for rr in range(R): a(f"v_add_f32_dpp v{56+rr}, v{base+rr}, v{base+rr} quad_perm:[1,0,3,2] row_mask:0xf bank_mask:0xf")
        for rr in range(R): a(f"v_add_f32_dpp v{base+rr}, v{56+rr}, v{56+rr} quad_perm:[2,3,0,1] row_mask:0xf bank_mask:0xf")
        for rr in range(R): a(f"v_add_f32_dpp v{56+rr}, v{base+rr}, v{base+rr} row_half_mirror row_mask:0xf bank_mask:0xf")
        for rr in range(R): a(f"v_add_f32_dpp v{base+rr}, v{56+rr}, v{56+rr} row_mirror row_mask:0xf bank_mask:0xf")
        for rr in range(R): a(f"v_mov_b32 v{56+rr}, v{base+rr}")
        a("s_nop 0")
        for rr in range(R): a(f"v_permlane16_swap_b32 v{56+rr}, v{base+rr}")
        for rr in range(R): a(f"v_add_f32 v{base+rr}, v{base+rr}, v{56+rr}")
        for rr in range(R): a(f"v_mov_b32 v{56+rr}, v{base+rr}")
        a("s_nop 0")
        for rr in range(R): a(f"v_permlane32_swap_b32 v{56+rr}, v{base+rr}")
        for rr in range(R): a(f"v_add_f32 v{base+rr}, v{base+rr}, v{56+rr}")
    wave_reduce(48)
    for rr in range(R):
        a(f"v_mul_f32 v{48+rr}, 0x3b000000, v{48+rr}")
    for rr in range(R):
        for e in range(8):
            a(f"v_sub_f32 v{64+8*rr+e}, v{64+8*rr+e}, v{48+rr}")
    for rr in range(R):
        a(f"v_mul_f32 v{52+rr}, v{64+8*rr}, v{64+8*rr}")
    for e in range(1, 8):
        for rr in range(R):
            a(f"v_fmac_f32 v{52+rr}, v{64+8*rr+e}, v{64+8*rr+e}")
    wave_reduce(52)
    a("v_mov_b32 v72, v48")
    a("v_mov_b32 v73, v52")
    for rr in range(1, R):
        a(f"v_cmp_eq_u32 vcc, {rr}, v1")
        a("s_nop 1")
        a(f"v_cndmask_b32 v72, v72, v{48+rr}, vcc")
        a(f"v_cndmask_b32 v73, v73, v{52+rr}, vcc")
    a(f"""
    v_lshl_add_u32 v74, v4, 2, v1     ; 4w + lane
    v_lshlrev_b32 v74, 2, v74
    s_lshl_b32 s41, s3, 6             ; b*16*4
    s_add_u32 s41, s41, {WS_ST1}
    v_mov_b32 v75, 0
    v_cmp_gt_u32 vcc, {R}, v1
    s_and_saveexec_b64 s[62:63], vcc
    buffer_store_dword v72, v74, s[32:35], s41 offen
    s_add_u32 s42, s41, 8192
    buffer_store_dword v75, v74, s[32:35], s42 offen
    s_add_u32 s42, s41, 16384
    buffer_store_dword v73, v74, s[32:35], s42 offen
    s_mov_b64 exec, s[62:63]
    s_waitcnt lgkmcnt(0)
    s_barrier
    """)
    a("""
    v_lshrrev_b32 v6, 4, v1
    v_lshrrev_b32 v7, 2, v1
    v_and_b32 v7, 3, v7
    v_and_b32 v28, 3, v1
    v_mul_u32_u24 v7, 1088, v7
    v_lshl_add_u32 v7, v6, 5, v7
    v_lshl_add_u32 v7, v28, 3, v7
    v_lshl_add_u32 v7, v4, 8, v7      ; + w*256 bytes
    """)
    for st in range(2):
        for g in range(4):
            a(f"ds_read_b64_tr_b16 v[{8+8*st+2*g}:{9+8*st+2*g}], v7 offset:{128*st + 4352*g}")
    a(f"""
    v_lshl_add_u32 v6, v4, 7, v1
    v_lshlrev_b32 v6, 12, v6
    s_lshl_b32 s41, s3, 5
    s_add_u32 s41, s41, {WS_XT0}
    s_add_u32 s42, s41, {64*4096}
    s_waitcnt lgkmcnt(0)
    """)
    for st in range(2):
        for k in range(2):
            a(f"buffer_store_dwordx4 v[{8+8*st+4*k}:{11+8*st+4*k}], v6, s[32:35], s{41+st} offen offset:{16*k}" + PST)
    trace_rt(a, 1, 0)
    a(f"s_branch {name}_end")
    a.label(f"{name}_pf")
    srd(a, 36, 22, D*DFF*2)
    a(f"""
    s_sub_u32 s3, s2, {NKG+NLN+NCS}
    s_lshl_b32 s40, s3, 16
    v_lshlrev_b32 v5, 4, v0
    """)
    for rr in range(16):
        a(f"buffer_load_dwordx4 v[{8+4*rr}:{11+4*rr}], v5, s[36:39], s40 offen")
        a("s_add_u32 s40, s40, 4096")
    a("s_waitcnt vmcnt(0)")
    a(f"s_branch {name}_end")
    if NCP:
        a.label(f"{name}_cpf")
        a("s_getpc_b64 s[40:41]")
        a.label(f"{name}_pc")
        a(f"""
        s_add_u32 s40, s40, conv1_kernel-{name}_pc
        s_addc_u32 s41, s41, 0
        v_lshlrev_b32 v5, 4, v0
        """)
        for rr in range(12):
            a(f"global_load_dwordx4 v[{8+4*rr}:{11+4*rr}], v5, s[40:41]")
            a("s_add_u32 s40, s40, 4096")
            a("s_addc_u32 s41, s41, 0")
        a("s_waitcnt vmcnt(0)")
        a(f"s_branch {name}_end")
    a.label(f"{name}_colsum")
    a("s_setprio 3")
    srd(a, 36, 20, D*DFF*2)
    a(f"""
    s_sub_u32 s3, s2, {NKG+NLN}
    v_and_b32 v1, 7, v0           ; cg
    v_lshrrev_b32 v2, 3, v0       ; rg
    v_mul_u32_u24 v5, 57344, v2   ; rg*16*3584
    v_lshl_add_u32 v5, v1, 4, v5
    s_lshl_b32 s40, s3, 7
    """)
    for rr in range(16):
        a(f"buffer_load_dwordx4 v[{8+4*rr}:{11+4*rr}], v5, s[36:39], s40 offen")
        a("s_add_u32 s40, s40, 3584")
    for e in range(8):
        a(f"v_mov_b32 v{80+e}, 0")
    for rr in range(16):
        a(f"s_waitcnt vmcnt({15-rr})")
        for e in range(8):
            unpack(a, 72, 8+4*rr, e)
            a(f"v_add_f32 v{80+e}, v{80+e}, v72")
    a("""
    v_lshlrev_b32 v6, 5, v0
    ds_write_b128 v6, v[80:83]
    ds_write_b128 v6, v[84:87] offset:16
    s_waitcnt lgkmcnt(0)
    s_barrier
    v_cmp_gt_u32 vcc, 64, v0
    s_and_saveexec_b64 s[62:63], vcc
    """)
    a(f"s_cbranch_execz {name}_end")
    a("v_lshlrev_b32 v6, 2, v0")
    for k in range(32):
        a(f"ds_read_b32 v{8+k}, v6 offset:{256*k}")
    a("s_waitcnt lgkmcnt(0)")
    for k in range(1, 32):
        a(f"v_add_f32 v8, v8, v{8+k}")
    a(f"""
    s_lshl_b32 s41, s3, 8
    s_add_u32 s41, s41, {WS_CS}
    buffer_store_dword v8, v6, s[32:35], s41 offen
    """)
    trace_rt(a, 1, 0)
    a.label(f"{name}_end")
    a("s_endpgm")
    return 128
```

```python
from common import *
import common, os
from prep import load_ptrs, unpack

KB = 0
KCS = 4160
UB = 16640
PBS = 9216
NW = 8
NMW = 4
CONV_LDS = PBS * NMW
CONV_THREADS = 64 * NW
STF = " sc0 sc1"

def bf16r_pair(a, pk, x0, x1, d0, d1):
    a(f"v_cvt_pk_bf16_f32 v{pk}, v{x0}, v{x1}")
    a(f"v_lshlrev_b32 v{d0}, 16, v{pk}")
    a(f"v_and_b32 v{d1}, 0xffff0000, v{pk}")

PT = 24320
FT = PT + 8*3072
CONVK_LDS = FT + 9792
LOG2E = "0x3fb8aa3b"
INV2PI = "0x3e22f983"

def gen_conv(a, name, xt_in, xt_out, st, fuse=False):
    kernel_begin(a, name)
    load_ptrs(a)
    a("s_cmp_ge_u32 s2, 512")
    a(f"s_cbranch_scc1 {name}_end")
    a(f"""
    v_lshlrev_b32 v1, 4, v0            ; 16 t
    v_lshlrev_b32 v2, 3, v0            ; 8 t
    v_lshrrev_b32 v45, 6, v0           ; w
    s_lshl_b32 s3, s2, 12
    s_add_u32 s36, s3, {xt_in}
    s_add_u32 s37, s3, {xt_out}
    s_mul_i32 s38, s2, {KR_STRIDE}
    s_add_u32 s38, s38, {WS_KR}
    s_mov_b32 s39, {st}
    s_mov_b32 s40, {st + 8192}
    s_mov_b32 s41, {st + 16384}
    v_readfirstlane_b32 s46, v45
    s_waitcnt lgkmcnt(0)
    """)
    srd(a, 32, 28, WS_SIZE)
    stamp_init(a); stamp(a, 0); stamp_rt(a, 40); trace_rt(a, 0, common.KIDX)
    if fuse:
        srd(a, 48, 6, 131072)
        srd(a, 52, 8, 131072)
        srd(a, 56, 10, 131072)
        srd(a, 60, 12, 131072)
        a(f"""
        v_and_b32 v44, 63, v0
        v_and_b32 v60, 15, v0         ; i
        v_lshrrev_b32 v61, 4, v44     ; kq
        v_lshlrev_b32 v63, 5, v45     ; w*32 bytes
        v_lshl_add_u32 v63, v61, 3, v63
        s_lshl_b32 s3, s2, 8          ; d*256 bytes
        buffer_load_dwordx2 v[64:65], v63, s[48:51], s3 offen
        buffer_load_dwordx2 v[66:67], v63, s[52:55], s3 offen
        buffer_load_dwordx2 v[68:69], v63, s[56:59], s3 offen
        buffer_load_dwordx2 v[70:71], v63, s[60:63], s3 offen
        s_lshr_b32 s3, s2, 1
        s_lshl_b32 s3, s3, 2
        s_add_u32 s14, s14, s3
        s_addc_u32 s15, s15, 0
        s_load_dword s47, s[14:15], 0
        """)
    a(f"""
    buffer_load_dwordx4 v[16:19], v1, s[32:35], s39 offen        ; piv
    buffer_load_dwordx4 v[20:23], v1, s[32:35], s40 offen        ; s1
    buffer_load_dwordx4 v[24:27], v1, s[32:35], s41 offen        ; s2
    buffer_load_dwordx2 v[4:5], v2, s[32:35], s36 offen          ; x
    s_lshr_b32 s3, s2, 1
    s_lshl_b32 s3, s3, 2
    s_add_u32 s16, s16, s3
    s_addc_u32 s17, s17, 0
    s_load_dword s42, s[16:17], 0
    v_mov_b32 v40, 0
    v_mov_b32 v41, 0
    v_mov_b32 v42, 0
    v_mov_b32 v43, 0
    """)
    def addr_block():
        a(f"""
        v_and_b32 v44, 63, v0              ; lane
        v_and_b32 v46, 31, v44             ; i / a
        v_lshrrev_b32 v47, 5, v44          ; g
        v_and_b32 v48, 3, v46
        v_sub_u32 v48, 3, v48              ; s = 3 - (i&3)
        v_mul_u32_u24 v48, {KCS}, v48
        v_lshrrev_b32 v49, 2, v46
        v_lshlrev_b32 v49, 3, v49          ; 2*4*(i>>2)
        v_sub_u32 v48, v48, v49
        v_lshl_add_u32 v48, v47, 4, v48    ; + 2*8g
        v_lshlrev_b32 v49, 9, v45          ; 2*32*8*w
        v_sub_u32 v48, v48, v49
        v_add_u32 v48, {KB + 2*(2044 - 32*39)}, v48     ; vA
        v_lshlrev_b32 v49, 3, v45
        v_sub_u32 v49, v46, v49            ; a - 8w
        v_add_u32 v49, 25, v49             ; 32 + a - 8w - 7
        v_mul_u32_u24 v49, 80, v49
        v_lshl_add_u32 v49, v47, 4, v49
        v_add_u32 v49, {UB}, v49           ; vB
        v_lshrrev_b32 v50, 3, v0
        v_and_b32 v51, 7, v0
        v_mul_u32_u24 v57, 80, v50
        v_lshl_add_u32 v57, v51, 3, v57
        v_mul_u32_u24 v58, 144, v50
        v_lshl_add_u32 v58, v51, 4, v58
        v_mul_u32_u24 v59, {PBS}, v45
        v_mul_u32_u24 v50, 144, v46
        v_add_u32 v59, v59, v50
        v_lshl_add_u32 v59, v47, 4, v59
        """)
        for r in range(32):
            a(f"v_mov_b32 v{64+r}, 0")
    def kcopies():
        a(f"""
        ds_write_b128 v1, v[8:11] offset:{KB}
        v_alignbyte_b32 v52, v9, v8, 2
        v_alignbyte_b32 v53, v10, v9, 2
        v_alignbyte_b32 v54, v11, v10, 2
        v_alignbyte_b32 v55, v12, v11, 2
        v_alignbyte_b32 v56, v13, v12, 2
        v_mov_b32 v60, v9
        v_mov_b32 v61, v10
        v_mov_b32 v62, v11
        v_mov_b32 v63, v12
        ds_write_b128 v1, v[52:55] offset:{KB + KCS}
        ds_write_b128 v1, v[60:63] offset:{KB + 2*KCS}
        v_mov_b32 v8, v53
        v_mov_b32 v9, v54
        v_mov_b32 v10, v55
        v_mov_b32 v11, v56
        ds_write_b128 v1, v[8:11] offset:{KB + 3*KCS}
        """)
    if not fuse:
        a(f"""
        s_cmp_ge_u32 s46, 4
        s_cbranch_scc1 {name}_nok
        buffer_load_dwordx4 v[8:11], v1, s[32:35], s38 offen         ; K chunk
        buffer_load_dwordx2 v[12:13], v1, s[32:35], s38 offen offset:16
        """)
        a.label(f"{name}_nok")
        addr_block()
        a(f"""
        s_cmp_ge_u32 s46, 4
        s_cbranch_scc1 {name}_hi
        v_cmp_gt_u32 vcc, 4, v0
        s_and_saveexec_b64 s[44:45], vcc
        """)
        for s_ in range(4):
            a(f"ds_write_b128 v1, v[40:43] offset:{KB + KCS*s_ + 4096}")
        a("s_mov_b64 exec, s[44:45]")
        a("s_waitcnt vmcnt(0)")
        kcopies()
        a(f"s_branch {name}_join")
        a.label(f"{name}_hi")
        a(f"""
        v_cmp_gt_u32 vcc, 416, v0
        s_and_saveexec_b64 s[44:45], vcc
        ds_write_b128 v1, v[40:43] offset:{UB - 4096}
        s_mov_b64 exec, s[44:45]
        """)
    else:
        a(f"""
        v_cmp_gt_u32 vcc, 4, v0
        s_and_saveexec_b64 s[44:45], vcc
        """)
        for s_ in range(4):
            a(f"ds_write_b128 v1, v[40:43] offset:{KB + KCS*s_ + 4096}")
        a(f"""
        ds_write_b128 v1, v[40:43] offset:{FT + 9760 - 32}
        s_mov_b64 exec, s[44:45]
        v_subrev_u32 v63, 256, v0
        v_cmp_gt_u32 vcc, 160, v63
        s_and_saveexec_b64 s[44:45], vcc
        ds_write_b128 v1, v[40:43] offset:{UB - 4096}
        s_mov_b64 exec, s[44:45]
        """)
        a("""
        v_lshlrev_b32 v6, 3, v60
        v_cvt_f32_u32 v72, v6
        v_lshrrev_b32 v6, 3, v60
        v_lshlrev_b32 v6, 7, v6
        v_and_b32 v7, 7, v60
        v_add_u32 v6, v6, v7
        v_cvt_f32_u32 v73, v6
        v_cmp_gt_u32 vcc, 8, v60
        v_lshrrev_b32 v6, 2, v60
        v_lshlrev_b32 v6, 7, v6
        v_and_b32 v7, 3, v60
        v_lshl_add_u32 v6, v7, 1, v6
        v_add_u32 v6, 256, v6
        v_and_b32 v7, 7, v60
        v_lshrrev_b32 v63, 1, v7
        v_lshlrev_b32 v63, 7, v63
        v_and_b32 v7, 1, v7
        v_lshl_add_u32 v63, v7, 2, v63
        v_add_u32 v63, 512, v63
        v_cndmask_b32 v6, v63, v6, vcc
        v_cvt_f32_u32 v74, v6
        v_lshlrev_b32 v6, 7, v60
        v_add_u32 v6, 1024, v6
        v_mov_b32 v7, 2048
        v_cndmask_b32 v6, v7, v6, vcc
        v_cvt_f32_u32 v75, v6
        """)
        a(f"""
        v_and_b32 v10, 3, v45             ; r
        v_cmp_gt_u32 vcc, 2, v61          ; kq < 2
        s_cmp_ge_u32 s46, 4
        s_cbranch_scc1 {name}_pT1
        v_lshrrev_b32 v7, 1, v61
        v_lshlrev_b32 v7, 7, v7
        v_and_b32 v63, 1, v61
        v_lshl_add_u32 v7, v63, 2, v7
        v_add_u32 v7, v7, v10
        v_lshl_add_u32 v8, v60, 3, v7     ; pos T0
        v_lshl_add_u32 v7, v61, 2, v10
        v_lshlrev_b32 v7, 7, v7
        v_add_u32 v7, 1024, v7
        v_mov_b32 v63, 2048
        v_cndmask_b32 v7, v63, v7, vcc
        v_lshl_add_u32 v9, v60, 3, v7     ; pos T2
        v_lshrrev_b32 v7, 3, v9
        v_add_lshl_u32 v9, v9, v7, 2
        v_lshlrev_b32 v6, 3, v0
        v_sub_u32 v6, 2047, v6            ; j0 = 2047 - 8t
        """)
        for e in range(0, 12, 2):
            a(f"""
            v_subrev_u32 v7, {e}, v6
            v_subrev_u32 v63, {e+1}, v6
            v_max_i32 v11, 0, v7
            v_max_i32 v12, 0, v63
            v_cvt_f32_u32 v11, v11
            v_cvt_f32_u32 v12, v12
            v_cvt_pk_bf16_f32 v11, v11, v12
            v_and_b32 v12, 0xffff0000, v11
            v_lshlrev_b32 v11, 16, v11
            v_cvt_u32_f32 v11, v11
            v_cvt_u32_f32 v12, v12
            v_lshrrev_b32 v13, 3, v11
            v_lshrrev_b32 v14, 3, v12
            v_add_lshl_u32 v{116+e}, v11, v13, 2
            v_add_lshl_u32 v{117+e}, v12, v14, 2
            """)
            if e >= 8:
                a(f"""
                v_mov_b32 v11, 9760
                v_cmp_gt_i32 vcc, 0, v7
                s_nop 1
                v_cndmask_b32 v{116+e}, v{116+e}, v11, vcc
                v_cmp_gt_i32 vcc, 0, v63
                s_nop 1
                v_cndmask_b32 v{117+e}, v{117+e}, v11, vcc
                """)
        a(f"s_branch {name}_pdone")
        a.label(f"{name}_pT1")
        a("""
        v_lshlrev_b32 v7, 7, v61
        v_lshl_add_u32 v7, v10, 1, v7
        v_add_u32 v7, 256, v7
        v_lshlrev_b32 v63, 8, v61
        v_lshrrev_b32 v11, 1, v10
        v_lshl_add_u32 v63, v11, 7, v63
        v_and_b32 v11, 1, v10
        v_lshl_add_u32 v63, v11, 2, v63
        v_cndmask_b32 v7, v63, v7, vcc
        v_lshl_add_u32 v8, v60, 3, v7     ; pos T1
        """)
        a.label(f"{name}_pdone")
        a(f"""
        v_lshrrev_b32 v7, 3, v8
        v_add_lshl_u32 v8, v8, v7, 2
        s_waitcnt lgkmcnt(0)
        s_and_b32 s43, s2, 1
        s_lshl_b32 s43, s43, 4
        s_lshr_b32 s47, s47, s43
        s_lshl_b32 s47, s47, 16
        v_mov_b32 v6, s47
        v_mul_f32 v6, {LOG2E}, v6
        v_exp_f32 v6, v6
        s_nop 0
        v_cvt_pk_bf16_f32 v6, v6, v6
        v_lshlrev_b32 v62, 16, v6     ; dt
        """)
        for r in range(12):
            a(f"v_mov_b32 v{104+r}, 0")
        a("s_waitcnt vmcnt(4)")
        P = [72, 73, 74, 75]
        for sm in range(4):
            unpack(a, 80, 64, sm)
            unpack(a, 81, 66, sm)
            unpack(a, 82, 68, sm)
            unpack(a, 83, 70, sm)
            a(f"""
            v_mul_f32 v80, {LOG2E}, v80
            v_exp_f32 v80, v80
            v_mul_f32 v81, v81, v62
            v_cvt_pk_bf16_f32 v80, v80, v80
            v_lshlrev_b32 v80, 16, v80
            v_mul_f32 v80, v80, v62
            v_mul_f32 v76, 0xbfb8aa3b, v80
            v_mul_f32 v77, {INV2PI}, v81
            v_mul_f32 v78, v82, v62
            v_mul_f32 v79, v83, v62
            """)
            for u in range(4): a(f"v_mul_f32 v{80+u}, v76, v{P[u]}")
            for u in range(4): a(f"v_mul_f32 v{84+u}, v77, v{P[u]}")
            for u in range(4): a(f"v_exp_f32 v{88+u}, v{80+u}")
            for u in range(4): a(f"v_fract_f32 v{84+u}, v{84+u}")
            for u in range(4): a(f"v_cos_f32 v{92+u}, v{84+u}")
            for u in range(4): a(f"v_sin_f32 v{96+u}, v{84+u}")
            for u in range(4): a(f"v_mul_f32 v{92+u}, v{88+u}, v{92+u}")
            for u in range(4): a(f"v_mul_f32 v{96+u}, v{88+u}, v{96+u}")
            a("""
            v_mul_f32 v100, v78, v92
            v_mul_f32 v101, v78, v96
            v_fma_f32 v100, -v79, v96, v100
            v_fma_f32 v101, -v79, v92, -v101
            s_nop 1
            """)
            for T in range(3): a(f"v_mfma_f32_16x16x4_f32 v[{104+4*T}:{107+4*T}], v{93+T}, v100, v[{104+4*T}:{107+4*T}]")
            for T in range(3): a(f"v_mfma_f32_16x16x4_f32 v[{104+4*T}:{107+4*T}], v{97+T}, v101, v[{104+4*T}:{107+4*T}]")
        a(f"""
        v_mul_u32_u24 v6, 3072, v45
        v_lshl_add_u32 v6, v44, 2, v6
        v_and_b32 v7, 255, v0
        v_lshlrev_b32 v7, 2, v7
        v_lshrrev_b32 v63, 8, v0
        v_lshl_add_u32 v7, v63, 10, v7
        s_nop 7
        """)
        for r in range(12):
            a(f"ds_write_b32 v6, v{104+r} offset:{PT + 256*r}")
        a("s_waitcnt lgkmcnt(0)")
        a("s_barrier")
        for w in range(8):
            a(f"ds_read_b32 v{80+w}, v7 offset:{PT + 3072*w}")
        a(f"""
        s_cmp_ge_u32 s46, 4
        s_cbranch_scc1 {name}_r1
        """)
        for w in range(8):
            a(f"ds_read_b32 v{88+w}, v7 offset:{PT + 3072*w + 2048}")
        a("s_waitcnt lgkmcnt(0)")
        for b in (88,):
            a(f"""
            v_add_f32 v{b}, v{b}, v{b+1}
            v_add_f32 v{b+2}, v{b+2}, v{b+3}
            v_add_f32 v{b+4}, v{b+4}, v{b+5}
            v_add_f32 v{b+6}, v{b+6}, v{b+7}
            v_add_f32 v{b}, v{b}, v{b+2}
            v_add_f32 v{b+4}, v{b+4}, v{b+6}
            v_add_f32 v{b}, v{b}, v{b+4}
            v_add_f32 v{b}, v{b}, v{b}
            ds_write_b32 v9, v{b} offset:{FT}
            """)
        a.label(f"{name}_r1")
        a("s_waitcnt lgkmcnt(0)")
        b = 80
        a(f"""
        v_add_f32 v{b}, v{b}, v{b+1}
        v_add_f32 v{b+2}, v{b+2}, v{b+3}
        v_add_f32 v{b+4}, v{b+4}, v{b+5}
        v_add_f32 v{b+6}, v{b+6}, v{b+7}
        v_add_f32 v{b}, v{b}, v{b+2}
        v_add_f32 v{b+4}, v{b+4}, v{b+6}
        v_add_f32 v{b}, v{b}, v{b+4}
        v_add_f32 v{b}, v{b}, v{b}
        ds_write_b32 v8, v{b} offset:{FT}
        s_waitcnt lgkmcnt(0)
        s_barrier
        s_cmp_ge_u32 s46, 4
        s_cbranch_scc1 {name}_join
        """)
        for e in range(12):
            a(f"ds_read_b32 v{80+e}, v{116+e} offset:{FT}")
        a("s_waitcnt lgkmcnt(0)")
        for e in range(0, 12, 2):
            a(f"v_cvt_pk_bf16_f32 v{8+e//2}, v{80+e}, v{81+e}")
        a(f"""
        buffer_store_dwordx4 v[8:11], v1, s[32:35], s38 offen
        v_cmp_gt_u32 vcc, 8, v0
        s_and_saveexec_b64 s[44:45], vcc
        v_add_u32 v6, 4096, v1
        buffer_store_dwordx4 v[40:43], v6, s[32:35], s38 offen
        s_mov_b64 exec, s[44:45]
        """)
        kcopies()
    a.label(f"{name}_join")
    if fuse:
        addr_block()
    a("s_waitcnt vmcnt(0)" if fuse else "s_waitcnt vmcnt(1)")
    stamp(a, 1)
    for e in range(4):
        a(f"v_mul_f32 v{20+e}, 0x3b000000, v{20+e}")
        a(f"v_mul_f32 v{24+e}, 0x3b000000, v{24+e}")
        a(f"v_add_f32 v{16+e}, v{16+e}, v{20+e}")
        a(f"v_fma_f32 v{24+e}, -v{20+e}, v{20+e}, v{24+e}")
        a(f"v_max_f32 v{24+e}, 0, v{24+e}")
    for e in range(0, 4, 2):
        bf16r_pair(a, 50, 16+e, 17+e, 16+e, 17+e)
        bf16r_pair(a, 51, 24+e, 25+e, 24+e, 25+e)
    for e in range(4):
        a(f"v_add_f32 v{24+e}, 0x3727c5ac, v{24+e}")
    for e in range(0, 4, 2):
        bf16r_pair(a, 51, 24+e, 25+e, 24+e, 25+e)
    for e in range(4):
        a(f"v_sqrt_f32 v{20+e}, v{24+e}")
    a("s_nop 0")
    for e in range(0, 4, 2):
        bf16r_pair(a, 51, 20+e, 21+e, 20+e, 21+e)
    for e in range(4):
        a(f"v_rcp_f32 v{24+e}, v{20+e}")
    a("s_waitcnt vmcnt(0)")
    for e in range(4):
        unpack(a, 28+e, 4, e)
    for e in range(4):
        a(f"v_sub_f32 v{32+e}, v{28+e}, v{16+e}")
    for e in range(0, 4, 2):
        bf16r_pair(a, 50, 32+e, 33+e, 32+e, 33+e)
    for e in range(4):
        a(f"v_mul_f32 v{36+e}, v{32+e}, v{24+e}")
    for e in range(4):
        a(f"v_fma_f32 v{32+e}, -v{36+e}, v{20+e}, v{32+e}")
    for e in range(4):
        a(f"v_fmac_f32 v{36+e}, v{32+e}, v{24+e}")
    for e in range(0, 4, 2):
        bf16r_pair(a, 6+e//2, 36+e, 37+e, 36+e, 37+e)
    a(f"ds_write_b64 v57, v[6:7] offset:{UB + 2560}")
    stamp(a, 2)
    a("s_waitcnt lgkmcnt(0)")
    a("s_barrier")
    stamp(a, 3)
    steps = [(cc, h) for cc in range(8) for h in range(2)]
    NS = len(steps)
    def rd(n, which):
        cc, h = steps[n]
        b = 96 + 16*(n & 1)
        oa = 2*(32*(7-cc) + 16*h)
        ob = 80*(7-cc) + 32*h
        if which == 0:
            a(f"ds_read_b64 v[{b}:{b+1}], v48 offset:{oa + 2048}")
            a(f"ds_read_b64 v[{b+2}:{b+3}], v48 offset:{oa + 2048 + 8}")
            a(f"ds_read_b128 v[{b+12}:{b+15}], v49 offset:{ob + 2560}")
        elif which == 1:
            a(f"ds_read_b128 v[{b+8}:{b+11}], v49 offset:{ob}")
        else:
            a(f"ds_read_b64 v[{b+4}:{b+5}], v48 offset:{oa}")
            a(f"ds_read_b64 v[{b+6}:{b+7}], v48 offset:{oa + 8}")
    a("s_cmp_ge_u32 s46, 4")
    a(f"s_cbranch_scc1 {name}_skipmain")
    rd(0, 0); rd(0, 1); rd(0, 2)
    for n in range(NS):
        last = n == NS - 1
        b = 96 + 16*(n & 1)
        a("s_waitcnt lgkmcnt(3)")
        a(f"v_mfma_f32_32x32x16_bf16 v[80:95], v[{b}:{b+3}], v[{b+12}:{b+15}], v[80:95]")
        if not last: rd(n+1, 0)
        a(f"s_waitcnt lgkmcnt({2 if last else 5})")
        a(f"v_mfma_f32_32x32x16_bf16 v[64:79], v[{b}:{b+3}], v[{b+8}:{b+11}], v[64:79]")
        if not last: rd(n+1, 1)
        a(f"s_waitcnt lgkmcnt({0 if last else 4})")
        a(f"v_mfma_f32_32x32x16_bf16 v[80:95], v[{b+4}:{b+7}], v[{b+8}:{b+11}], v[80:95]")
        if not last: rd(n+1, 2)
    a.label(f"{name}_skipmain")
    a("""
    s_and_b32 s43, s2, 1
    s_lshl_b32 s43, s43, 4
    s_lshr_b32 s42, s42, s43
    s_lshl_b32 s42, s42, 16
    """)
    for e in range(4):
        a(f"v_mul_f32 v{32+e}, s42, v{36+e}")
    for e in range(0, 4, 2):
        bf16r_pair(a, 50, 32+e, 33+e, 32+e, 33+e)
    a("s_barrier")
    stamp(a, 4)
    a("s_cmp_ge_u32 s46, 4")
    a(f"s_cbranch_scc1 {name}_skipw")
    a("s_nop 3")
    for T in range(2):
        for q in range(4):
            a(f"ds_write_b128 v59, v[{64+16*T+4*q}:{67+16*T+4*q}] offset:{144*32*T + 32*q}")
    a("s_waitcnt lgkmcnt(0)")
    a.label(f"{name}_skipw")
    a("s_barrier")
    for w in range(NMW):
        a(f"ds_read_b128 v[{96+4*w}:{99+4*w}], v58 offset:{PBS*w}")
    for w in range(0, NMW, 2):
        a(f"s_waitcnt lgkmcnt({NMW-2-w})")
        for e in range(4):
            a(f"v_add_f32 v{96+4*w+e}, v{96+4*w+e}, v{100+4*w+e}")
    for e in range(4):
        a(f"v_add_f32 v{96+e}, v{96+e}, v{104+e}")
    for e in range(0, 4, 2):
        bf16r_pair(a, 50, 96+e, 97+e, 96+e, 97+e)
    for e in range(4):
        a(f"v_add_f32 v{96+e}, v{96+e}, v{32+e}")
    for e in range(0, 4, 2):
        bf16r_pair(a, 50, 96+e, 97+e, 96+e, 97+e)
    for e in range(4):
        a(f"v_add_f32 v{96+e}, v{96+e}, v{28+e}")
    for e in range(0, 4, 2):
        a(f"v_cvt_pk_bf16_f32 v{100+e//2}, v{96+e}, v{97+e}")
    a("buffer_store_dwordx2 v[100:101], v2, s[32:35], s37 offen" + STF)
    stamp(a, 5)
    if common.STAMP:
        a("s_waitcnt vmcnt(0)")
    stamp(a, 6); stamp_rt(a, 42); trace_rt(a, 1, common.KIDX)
    a.label(f"{name}_end")
    a("s_endpgm")
    return 128
```

```python
from common import *
import common, os
from prep import load_ptrs
from conv import bf16r_pair

G2ST = os.environ.get("G2ST", " sc0 sc1")
G2_LDS = 131072 + 8192
RB = 131072

def gen_gemm2(a, name, xt_res, xt_out, final):
    NST = 14
    kernel_begin(a, name)
    load_ptrs(a)
    a("s_cmp_ge_u32 s2, 256")
    a(f"s_cbranch_scc1 {name}_end")
    a(f"""
    v_and_b32 v1, 63, v0          ; lane
    v_lshrrev_b32 v2, 6, v0       ; wave
    v_lshrrev_b32 v3, 4, v1       ; q = L>>4
    v_lshrrev_b32 v4, 3, v1
    v_readfirstlane_b32 s42, v2
    v_and_b32 v2, 3, v2
    s_and_b32 s3, s2, 7
    s_lshl_b32 s3, s3, 2
    s_lshr_b32 s40, s2, 3
    s_and_b32 s41, s40, 3
    s_add_u32 s40, s3, s41        ; lt (0..31)
    s_lshr_b32 s41, s2, 5         ; dt (0..7)
    s_lshl_b32 s47, s41, 18       ; dt*64*4096
    s_lshl_b32 s48, s40, 7        ; lt*128
    s_add_u32 s47, s47, s48
    s_waitcnt lgkmcnt(0)
    """)
    srd(a, 32, 28, WS_SIZE)
    stamp_init(a); stamp(a, 0); stamp_rt(a, 40); trace_rt(a, 0, common.KIDX)
    a("s_cmp_lt_u32 s42, 4")
    a(f"s_cbranch_scc1 {name}_compute")
    srd(a, 36, 22, D*DFF*2)
    a(f"""
    s_and_b32 s42, s42, 3
    v_and_b32 v5, 7, v1
    v_lshrrev_b32 v6, 1, v4
    v_and_b32 v6, 1, v6
    v_lshlrev_b32 v6, 2, v6
    v_xor_b32 v5, v5, v6
    v_lshl_add_u32 v6, v2, 5, v4  ; row
    v_lshlrev_b32 v6, 10, v6      ; *1024
    v_lshl_add_u32 v6, v5, 4, v6  ; voffset w2
    v_lshl_add_u32 v7, v2, 2, v3  ; 4w + q
    v_and_b32 v5, 15, v1
    v_xor_b32 v5, v5, v7
    v_mul_u32_u24 v7, 3584, v7
    v_lshl_add_u32 v7, v5, 4, v7  ; voffset h
    s_lshl_b32 s43, s41, 7
    s_mul_i32 s44, s40, {64*3584}
    s_add_u32 s44, s44, {WS_H}
    s_lshl_b32 s45, s42, 12
    """)
    if os.environ.get("SAMETILE"):
        a("s_mov_b32 s43, 0")
        a(f"s_mov_b32 s44, {WS_H}")
    a(f"""
    s_lshl_b32 s46, s42, 10
    """)
    if os.environ.get("CONTIG"):
        a("v_lshlrev_b32 v6, 4, v1")
        a("v_mov_b32 v7, v6")
        a("s_mul_i32 s43, s41, 229376")
        a("s_lshl_b32 s52, s42, 12")
        a("s_add_u32 s43, s43, s52")
        a("s_mul_i32 s44, s40, 229376")
        a(f"s_add_u32 s44, s44, {WS_H}")
        a("s_add_u32 s44, s44, s52")
    def dma(stage):
        buf = stage & 3
        for j in range(4):
            if os.environ.get("CONTIG"):
                a(f"s_add_u32 s50, s44, {16384*stage + 1024*j}")
            else:
                a(f"s_add_u32 s50, s44, {16*j*3584 + 256*stage}")
            a(f"s_add_u32 m0, s46, {buf*32768 + 16384 + j*4096}")
            a("s_nop 0")
            a("buffer_load_dwordx4 v7, s[32:35], s50 offen lds")
        for j in range(4):
            if os.environ.get("CONTIG"):
                a(f"s_add_u32 s50, s43, {16384*stage + 1024*j}")
            else:
                a(f"s_add_u32 s50, s43, {(128*stage + 8*j)*1024}")
            a(f"s_add_u32 m0, s45, {buf*32768 + j*1024}")
            a("s_nop 0")
            a("buffer_load_dwordx4 v6, s[36:39], s50 offen lds")
    for st in range(3):
        dma(st)
    a(f"""
    v_lshl_add_u32 v8, v2, 4, v4
    v_lshlrev_b32 v8, 12, v8
    v_and_b32 v5, 7, v1
    v_lshl_add_u32 v8, v5, 4, v8
    s_add_u32 s48, s47, {xt_res}
    s_lshl_b32 s49, s42, 11       ; 16 w rows * 128
    s_add_u32 m0, s49, {RB}
    s_nop 0
    buffer_load_dwordx4 v8, s[32:35], s48 offen lds
    s_add_u32 s48, s48, {8*4096}
    s_add_u32 m0, s49, {RB + 1024}
    s_nop 0
    buffer_load_dwordx4 v8, s[32:35], s48 offen lds
    """)
    for st in range(NST):
        later = min(st + 2, NST - 1) - st
        n = 8*later + (2 if st <= 2 else 0)
        a(f"s_waitcnt vmcnt({n})")
        a("s_barrier")
        if st + 3 < NST:
            dma(st + 3)
    a("s_endpgm")
    a.label(f"{name}_compute")
    if final:
        srd(a, 56, 24, L*D*2)
    a("""
    v_and_b32 v9, 1, v2           ; td
    v_lshrrev_b32 v10, 1, v2      ; tl
    v_lshrrev_b32 v11, 5, v1      ; g
    v_lshrrev_b32 v12, 2, v1
    v_and_b32 v12, 3, v12         ; r
    v_and_b32 v13, 3, v1          ; c
    v_lshrrev_b32 v14, 1, v3
    v_lshl_add_u32 v14, v14, 3, v12
    v_lshlrev_b32 v14, 7, v14
    v_lshrrev_b32 v15, 1, v12
    v_xor_b32 v15, v15, v9
    v_lshl_add_u32 v14, v15, 6, v14
    v_and_b32 v15, 1, v3
    v_lshl_add_u32 v14, v15, 5, v14
    v_lshrrev_b32 v15, 1, v13
    v_lshl_add_u32 v14, v15, 4, v14
    v_and_b32 v15, 1, v13
    v_lshl_add_u32 v16, v15, 3, v14      ; A low
    v_add_u32 v17, 0x10000, v16          ; A high
    v_and_b32 v18, 31, v1                ; n
    v_lshl_add_u32 v14, v10, 5, v18
    v_lshlrev_b32 v14, 8, v14
    v_and_b32 v15, 15, v18
    v_xor_b32 v15, v15, v11
    v_lshl_add_u32 v14, v15, 4, v14
    v_add_u32 v14, 0x4000, v14
    """)
    for ks in range(8):
        a(f"v_xor_b32 v{20+ks}, {32*ks}, v14")
        a(f"v_add_u32 v{28+ks}, 0x10000, v{20+ks}")
    for r in range(16):
        a(f"v_mov_b32 v{64+r}, 0")
    if not final:
        a(f"""
        v_lshl_add_u32 v19, v10, 5, v18
        v_lshlrev_b32 v19, 2, v19
        s_lshl_b32 s51, s40, 8
        s_add_u32 s51, s51, {WS_ST3}
        buffer_load_dword v40, v19, s[32:35], s51 offen
        """)
    extra = 0 if final else 1
    def frag_reads(stage, ks, p):
        buf = stage & 3
        hi = buf >= 2
        b = 96 + 8*p
        off = (buf & 1)*32768
        ad = 17 if hi else 16
        a(f"ds_read_b64_tr_b16 v[{b}:{b+1}], v{ad} offset:{off + ks*2048}")
        a(f"ds_read_b64_tr_b16 v[{b+2}:{b+3}], v{ad} offset:{off + ks*2048 + 512}")
        bd = (28 if hi else 20) + ks
        a(f"ds_read_b128 v[{b+4}:{b+7}], v{bd} offset:{off}")
    NP = 4
    for st in range(NST):
        a("s_barrier")
        stamp(a, 1+st)
        if os.environ.get("NOCOMP"): continue
        frag_reads(st, 0, 0)
        frag_reads(st, 1, 1)
        for ks in range(8):
            if ks + 2 < 8:
                frag_reads(st, ks+2, (ks+2) % NP)
                a("s_waitcnt lgkmcnt(6)")
            elif ks + 1 < 8:
                a("s_waitcnt lgkmcnt(3)")
            else:
                a("s_waitcnt lgkmcnt(0)")
            b = 96 + 8*(ks % NP)
            a(f"v_mfma_f32_32x32x16_bf16 v[64:79], v[{b}:{b+3}], v[{b+4}:{b+7}], v[64:79]")
    stamp(a, 15)
    a(f"""
    v_lshrrev_b32 v14, 1, v3
    v_lshl_add_u32 v14, v14, 2, v12
    v_lshl_add_u32 v14, v9, 5, v14
    v_lshlrev_b32 v14, 7, v14
    v_lshl_add_u32 v14, v10, 6, v14
    v_and_b32 v15, 1, v3
    v_lshl_add_u32 v14, v15, 5, v14
    v_lshl_add_u32 v14, v13, 3, v14
    v_add_u32 v14, {RB}, v14
    """)
    for qd in range(4):
        a(f"ds_read_b64_tr_b16 v[{80+2*qd}:{81+2*qd}], v14 offset:{1024*qd}")
    a("s_nop 7")
    for r in range(0, 16, 2):
        bf16r_pair(a, 41, 64+r, 65+r, 64+r, 65+r)
    a("s_waitcnt vmcnt(0) lgkmcnt(0)")
    for r in range(16):
        if r % 2 == 0:
            a(f"v_lshlrev_b32 v41, 16, v{80+r//2}")
        else:
            a(f"v_and_b32 v41, 0xffff0000, v{80+r//2}")
        a(f"v_add_f32 v{64+r}, v{64+r}, v41")
    for r in range(0, 16, 2):
        a(f"v_cvt_pk_bf16_f32 v{88+r//2}, v{64+r}, v{65+r}")
    if final:
        a("s_nop 1")
        for qp in range(2):
            a(f"v_permlane32_swap_b32 v{88+4*qp}, v{90+4*qp}")
            a(f"v_permlane32_swap_b32 v{89+4*qp}, v{91+4*qp}")
        a(f"""
        v_lshl_add_u32 v14, v10, 5, v18
        v_lshlrev_b32 v14, 10, v14
        v_lshl_add_u32 v14, v9, 6, v14
        v_lshl_add_u32 v14, v11, 4, v14
        s_lshl_b32 s50, s40, 16
        s_lshl_b32 s51, s41, 7
        s_add_u32 s50, s50, s51
        buffer_store_dwordx4 v[88:91], v14, s[56:59], s50 offen
        buffer_store_dwordx4 v[92:95], v14, s[56:59], s50 offen offset:32
        """)
    else:
        a("v_mov_b32 v42, 0")
        a("v_mov_b32 v43, 0")
        a(f"""
        v_lshl_add_u32 v14, v9, 3, v11       ; 8 td + g
        v_lshlrev_b32 v14, 9, v14            ; (32 td + 4 g) * 128
        v_lshl_add_u32 v15, v10, 5, v18
        v_lshl_add_u32 v14, v15, 1, v14
        v_add_u32 v14, {RB}, v14
        """)
        for r in range(16):
            qd, e = r // 4, r % 4
            pk = 88 + r//2
            if r % 2 == 0:
                a(f"v_lshlrev_b32 v41, 16, v{pk}")
                a(f"ds_write_b16 v14, v{pk} offset:{(8*qd + e)*128}")
            else:
                a(f"v_and_b32 v41, 0xffff0000, v{pk}")
                a(f"ds_write_b16_d16_hi v14, v{pk} offset:{(8*qd + e)*128}")
            a("v_sub_f32 v41, v41, v40")
            a("v_add_f32 v42, v42, v41")
            a("v_fmac_f32 v43, v41, v41")
        a("""
        s_nop 1
        v_permlane32_swap_b32 v42, v43
        s_nop 1
        v_add_f32 v42, v42, v43
        """)
        a(f"""
        v_lshl_add_u32 v15, v10, 5, v18
        v_lshlrev_b32 v15, 2, v15
        v_lshl_add_u32 v15, v11, 13, v15     ; + g*8192
        s_lshl_b32 s51, s40, 8
        s_add_u32 s51, s51, {WS_ST3 + 8192}
        buffer_atomic_add_f32 v42, v15, s[32:35], s51 offen
        s_waitcnt lgkmcnt(0)
        s_barrier
        v_lshlrev_b32 v14, 5, v0
        v_add_u32 v14, {RB}, v14
        ds_read_b128 v[96:99], v14
        ds_read_b128 v[100:103], v14 offset:16
        v_lshrrev_b32 v15, 2, v0
        v_lshlrev_b32 v15, 12, v15
        v_and_b32 v14, 3, v0
        v_lshl_add_u32 v15, v14, 5, v15
        s_add_u32 s48, s47, {xt_out}
        s_waitcnt lgkmcnt(0)
        buffer_store_dwordx4 v[96:99], v15, s[32:35], s48 offen{G2ST}
        buffer_store_dwordx4 v[100:103], v15, s[32:35], s48 offen offset:16{G2ST}
        """)
    stamp(a, 16)
    if common.STAMP:
        a("s_waitcnt vmcnt(0)")
    stamp(a, 17); stamp_rt(a, 42); trace_rt(a, 1, common.KIDX)
    a.label(f"{name}_end")
    a("s_endpgm")
    return 128
```

```python
from common import *
import common

import os
PST = os.environ.get("PST", " sc0 sc1")
LOG2E = "0x3fb8aa3b"
INV2PI = "0x3e22f983"
NLN = 128
NCS = 28
NPF = 28
NKG = 512
NCP = int(os.environ.get('NCP', '0'))
NPREP = NLN + NCS + NPF + NKG + NCP
PREP_PB = 4 * 3072 + 9792
PREP_LDS = PREP_PB + 2048 + 256

def load_ptrs(a):
    a("s_load_dwordx16 s[4:19], s[0:1], 0")
    a("s_load_dwordx8 s[20:27], s[0:1], 64")
    a("s_load_dwordx2 s[28:29], s[0:1], 96")

def unpack(a, dst, base, e):
    if e % 2 == 0:
        a(f"v_lshlrev_b32 v{dst}, 16, v{base + e//2}")
    else:
        a(f"v_and_b32 v{dst}, 0xffff0000, v{base + e//2}")

def gen_prep(a, name="prep_kernel"):
    kernel_begin(a, name)
    load_ptrs(a)
    a(f"s_cmp_ge_u32 s2, {NPREP}")
    a(f"s_cbranch_scc1 {name}_end")
    a("s_waitcnt lgkmcnt(0)")
    srd(a, 32, 28, WS_SIZE)
    stamp_init(a); stamp(a, 0); stamp(a, 8, 256); trace_rt(a, 0, 0)
    if NCP:
        a(f"s_cmp_ge_u32 s2, {NKG+NLN+NCS+NPF}")
        a(f"s_cbranch_scc1 {name}_cpf")
    a(f"s_cmp_ge_u32 s2, {NKG+NLN+NCS}")
    a(f"s_cbranch_scc1 {name}_pf")
    a(f"s_cmp_ge_u32 s2, {NKG+NLN}")
    a(f"s_cbranch_scc1 {name}_colsum")
    a(f"s_cmp_ge_u32 s2, 512")
    a(f"s_cbranch_scc1 {name}_ln")
    srd(a, 36, 6, 131072)
    srd(a, 40, 8, 131072)
    srd(a, 44, 10, 131072)
    srd(a, 48, 12, 131072)
    a("""
    v_and_b32 v1, 63, v0
    v_and_b32 v2, 15, v0          ; i
    v_lshrrev_b32 v3, 4, v1       ; kq
    v_lshrrev_b32 v4, 6, v0       ; w
    v_and_b32 v5, 127, v0
    v_lshlrev_b32 v5, 1, v5
    s_lshl_b32 s3, s2, 8          ; d*256 bytes
    buffer_load_ushort v8, v5, s[36:39], s3 offen
    buffer_load_ushort v9, v5, s[40:43], s3 offen
    buffer_load_ushort v10, v5, s[44:47], s3 offen
    buffer_load_ushort v11, v5, s[48:51], s3 offen
    s_lshr_b32 s3, s2, 1
    s_lshl_b32 s3, s3, 2
    s_add_u32 s14, s14, s3
    s_addc_u32 s15, s15, 0
    s_load_dword s60, s[14:15], 0
    """)
    a("""
    v_lshlrev_b32 v6, 3, v2
    v_cvt_f32_u32 v24, v6
    v_lshrrev_b32 v6, 3, v2
    v_lshlrev_b32 v6, 7, v6
    v_and_b32 v7, 7, v2
    v_add_u32 v6, v6, v7
    v_cvt_f32_u32 v25, v6
    v_cmp_gt_u32 vcc, 8, v2       ; i < 8
    v_lshrrev_b32 v6, 2, v2
    v_lshlrev_b32 v6, 7, v6
    v_and_b32 v7, 3, v2
    v_lshl_add_u32 v6, v7, 1, v6
    v_add_u32 v6, 256, v6         ; case i<8
    v_and_b32 v7, 7, v2           ; x = i-8 (when i>=8)
    v_lshrrev_b32 v28, 1, v7
    v_lshlrev_b32 v28, 7, v28
    v_and_b32 v7, 1, v7
    v_lshl_add_u32 v28, v7, 2, v28
    v_add_u32 v28, 512, v28
    v_cndmask_b32 v6, v28, v6, vcc
    v_cvt_f32_u32 v26, v6
    v_lshlrev_b32 v6, 7, v2
    v_add_u32 v6, 1024, v6
    v_mov_b32 v7, 2048
    v_cndmask_b32 v6, v7, v6, vcc
    v_cvt_f32_u32 v27, v6
    """)
    FT = 4 * 3072
    a("""
    v_lshlrev_b32 v6, 3, v0
    v_sub_u32 v6, 2047, v6        ; j0 = 2047 - 8t
    """)
    for e in range(0, 8, 2):
        a(f"""
        v_subrev_u32 v7, {e}, v6
        v_subrev_u32 v28, {e+1}, v6
        v_cvt_f32_u32 v7, v7
        v_cvt_f32_u32 v28, v28
        v_cvt_pk_bf16_f32 v7, v7, v28
        v_and_b32 v28, 0xffff0000, v7
        v_lshlrev_b32 v7, 16, v7
        v_cvt_u32_f32 v7, v7
        v_cvt_u32_f32 v28, v28
        v_lshrrev_b32 v30, 3, v7
        v_lshrrev_b32 v31, 3, v28
        v_add_lshl_u32 v{112+e}, v7, v30, 2
        v_add_lshl_u32 v{113+e}, v28, v31, 2
        """)
    a(f"""
    v_cmp_gt_u32 vcc, 2, v3           ; kq < 2
    v_lshrrev_b32 v7, 1, v3
    v_lshlrev_b32 v7, 7, v7           ; 128*(kq>>1)
    v_and_b32 v28, 1, v3
    v_lshl_add_u32 v7, v28, 2, v7     ; + 4*(kq&1)
    v_add_u32 v7, v7, v4              ; + r
    v_lshl_add_u32 v120, v2, 3, v7    ; pos T0
    v_lshlrev_b32 v7, 7, v3           ; 128 kq
    v_lshl_add_u32 v7, v4, 1, v7      ; + 2r
    v_add_u32 v7, 256, v7             ; case a
    v_lshlrev_b32 v28, 8, v3
    v_lshrrev_b32 v30, 1, v4
    v_lshl_add_u32 v28, v30, 7, v28   ; + 128 (r>>1)
    v_and_b32 v30, 1, v4
    v_lshl_add_u32 v28, v30, 2, v28   ; + 4 (r&1)
    v_cndmask_b32 v7, v28, v7, vcc
    v_lshl_add_u32 v121, v2, 3, v7    ; pos T1
    v_lshl_add_u32 v7, v3, 2, v4      ; 4kq + r
    v_lshlrev_b32 v7, 7, v7
    v_add_u32 v7, 1024, v7
    v_mov_b32 v28, 2048
    v_cndmask_b32 v7, v28, v7, vcc
    v_lshl_add_u32 v122, v2, 3, v7    ; pos T2
    """)
    for k in range(3):
        a(f"v_lshrrev_b32 v7, 3, v{120+k}")
        a(f"v_add_lshl_u32 v{120+k}, v{120+k}, v7, 2")
    a("s_waitcnt lgkmcnt(0)")
    a("""
    s_and_b32 s61, s2, 1
    s_lshl_b32 s61, s61, 4
    s_lshr_b32 s60, s60, s61
    s_lshl_b32 s60, s60, 16
    v_mov_b32 v6, s60
    v_mul_f32 v6, %s, v6
    v_exp_f32 v6, v6
    s_nop 0
    v_cvt_pk_bf16_f32 v6, v6, v6
    v_lshlrev_b32 v29, 16, v6     ; v29 = dt
    """ % LOG2E)
    for r in range(12):
        a(f"v_mov_b32 v{100+r}, 0")
    a("s_waitcnt vmcnt(0)")
    a(f"""
    v_lshlrev_b32 v64, 16, v8
    v_lshlrev_b32 v65, 16, v9
    v_lshlrev_b32 v66, 16, v10
    v_lshlrev_b32 v67, 16, v11
    v_mul_f32 v64, {LOG2E}, v64
    v_exp_f32 v64, v64
    v_mul_f32 v65, v65, v29
    v_cvt_pk_bf16_f32 v64, v64, v64
    v_lshlrev_b32 v64, 16, v64
    v_mul_f32 v64, v64, v29
    v_mul_f32 v32, 0xbfb8aa3b, v64
    v_mul_f32 v33, {INV2PI}, v65
    v_mul_f32 v34, v66, v29
    v_mul_f32 v35, v67, v29
    v_lshlrev_b32 v5, 3, v5           ; mode*16
    ds_write_b128 v5, v[32:35] offset:{PREP_PB}
    v_lshlrev_b32 v5, 9, v4           ; (32 w + 8 kq) * 16
    v_lshl_add_u32 v5, v3, 7, v5
    s_waitcnt lgkmcnt(0)
    s_barrier
    ds_read_b128 v[32:35], v5 offset:{PREP_PB}
    s_mov_b32 s61, 0
    """)
    P = [24, 25, 26, 27]
    stamp(a, 1); stamp(a, 9, 256)
    a.label(f"{name}_kloop")
    cb = 76
    for m in range(4):
        a(f"""
        s_waitcnt lgkmcnt(0)
        v_mov_b32 v36, v32
        v_mov_b32 v37, v33
        v_mov_b32 v38, v34
        v_mov_b32 v39, v35
        v_add_u32 v5, 16, v5
        ds_read_b128 v[32:35], v5 offset:{PREP_PB}
        """)
        for u in range(4): a(f"v_mul_f32 v{64+u}, v36, v{P[u]}")
        for u in range(4): a(f"v_mul_f32 v{68+u}, v37, v{P[u]}")
        for u in range(4): a(f"v_exp_f32 v{72+u}, v{64+u}")
        for u in range(4): a(f"v_fract_f32 v{68+u}, v{68+u}")
        for u in range(4): a(f"v_cos_f32 v{cb+u}, v{68+u}")
        for u in range(4): a(f"v_sin_f32 v{cb+4+u}, v{68+u}")
        for u in range(4): a(f"v_mul_f32 v{cb+u}, v{72+u}, v{cb+u}")
        for u in range(4): a(f"v_mul_f32 v{cb+4+u}, v{72+u}, v{cb+4+u}")
        a(f"""
        v_mul_f32 v{cb+8}, v38, v{cb}
        v_mul_f32 v{cb+9}, v38, v{cb+4}
        v_fma_f32 v{cb+8}, -v39, v{cb+4}, v{cb+8}
        v_fma_f32 v{cb+9}, -v39, v{cb}, -v{cb+9}
        """)
        pairs = [(cb+1+T, cb+5+T, 40+4*T+m, 52+4*T+m) for T in range(3)] + [(cb+8, cb+9, 86+m, 90+m)]
        for (x, y, hi, lo) in pairs:
            a(f"v_cvt_pk_bf16_f32 v{hi}, v{x}, v{y}")
        for k, (x, y, hi, lo) in enumerate(pairs):
            a(f"v_lshlrev_b32 v{64+2*k}, 16, v{hi}")
            a(f"v_and_b32 v{65+2*k}, 0xffff0000, v{hi}")
        for k, (x, y, hi, lo) in enumerate(pairs):
            a(f"v_sub_f32 v{64+2*k}, v{x}, v{64+2*k}")
            a(f"v_sub_f32 v{65+2*k}, v{y}, v{65+2*k}")
        for k, (x, y, hi, lo) in enumerate(pairs):
            a(f"v_cvt_pk_bf16_f32 v{lo}, v{64+2*k}, v{65+2*k}")
    a("""
    s_add_u32 s61, s61, 1
    s_cmp_lt_u32 s61, 2
    """)
    for T in range(3): a(f"v_mfma_f32_16x16x32_bf16 v[{100+4*T}:{103+4*T}], v[{40+4*T}:{43+4*T}], v[86:89], v[{100+4*T}:{103+4*T}]")
    for T in range(3): a(f"v_mfma_f32_16x16x32_bf16 v[{100+4*T}:{103+4*T}], v[{40+4*T}:{43+4*T}], v[90:93], v[{100+4*T}:{103+4*T}]")
    for T in range(3): a(f"v_mfma_f32_16x16x32_bf16 v[{100+4*T}:{103+4*T}], v[{52+4*T}:{55+4*T}], v[86:89], v[{100+4*T}:{103+4*T}]")
    a(f"s_cbranch_scc1 {name}_kloop")
    a("s_waitcnt lgkmcnt(0)")
    stamp(a, 2); stamp(a, 10, 256)
    a("""
    v_mul_u32_u24 v6, 3072, v4
    v_lshl_add_u32 v6, v1, 2, v6
    v_lshlrev_b32 v7, 2, v0           ; t*4  (= r*256 + lane*4)
    s_nop 7
    s_nop 1
    """)
    for r in range(12):
        a(f"ds_write_b32 v6, v{100+r} offset:{256*r}")
    a("s_waitcnt lgkmcnt(0)")
    a("s_barrier")
    for k in range(3):
        for w in range(4):
            a(f"ds_read_b32 v{32+4*k+w}, v7 offset:{3072*w + 1024*k}")
    a("s_waitcnt lgkmcnt(0)")
    for k in range(3):
        b = 32 + 4*k
        a(f"v_add_f32 v{b}, v{b}, v{b+1}")
        a(f"v_add_f32 v{b+2}, v{b+2}, v{b+3}")
        a(f"v_add_f32 v{b}, v{b}, v{b+2}")
        a(f"v_add_f32 v{b}, v{b}, v{b}")
    for k in range(3):
        a(f"ds_write_b32 v{120+k}, v{32+4*k} offset:{FT}")
    a("s_waitcnt lgkmcnt(0)")
    a("s_barrier")
    for e in range(8):
        a(f"ds_read_b32 v{32+e}, v{112+e} offset:{FT}")
    a(f"""
    s_mul_i32 s3, s2, {KR_STRIDE}
    s_add_u32 s3, s3, {WS_KR}
    v_lshlrev_b32 v6, 4, v0
    v_mov_b32 v68, 0
    v_mov_b32 v69, 0
    v_mov_b32 v70, 0
    v_mov_b32 v71, 0
    s_waitcnt lgkmcnt(0)
    """)
    for e in range(0, 8, 2):
        a(f"v_cvt_pk_bf16_f32 v{64+e//2}, v{32+e}, v{33+e}")
    a("buffer_store_dwordx4 v[64:67], v6, s[32:35], s3 offen" + PST)
    stamp(a, 3); stamp(a, 11, 256)
    trace_rt(a, 1, 0)
    a(f"""
    v_cmp_gt_u32 vcc, 8, v0
    s_and_saveexec_b64 s[62:63], vcc
    s_cbranch_execz {name}_end
    v_add_u32 v6, 4096, v6
    buffer_store_dwordx4 v[68:71], v6, s[32:35], s3 offen
    s_branch {name}_end
    """)
    a.label(f"{name}_ln")
    a("s_setprio 3")
    srd(a, 36, 4, 2097152)
    R = 4
    a("s_sub_u32 s3, s2, 512")
    a("""
    v_and_b32 v1, 63, v0
    v_lshrrev_b32 v4, 6, v0       ; w
    v_lshlrev_b32 v5, 12, v4      ; w*4 rows*1024
    v_lshl_add_u32 v5, v1, 4, v5
    s_lshl_b32 s40, s3, 14        ; b*16 rows*1024
    """)
    for rr in range(R):
        a(f"buffer_load_dwordx4 v[{8+4*rr}:{11+4*rr}], v5, s[36:39], s40 offen offset:{1024*rr}")
    a("""
    v_mul_u32_u24 v40, 4352, v4
    v_lshl_add_u32 v40, v1, 4, v40
    """)
    for rr in range(R):
        a(f"s_waitcnt vmcnt({R-1-rr})")
        a(f"ds_write_b128 v40, v[{8+4*rr}:{11+4*rr}] offset:{1088*rr}")
        for e in range(8):
            unpack(a, 64+8*rr+e, 8+4*rr, e)
        b = 64 + 8*rr
        a(f"v_add_f32 v{48+rr}, v{b}, v{b+1}")
        a(f"v_add_f32 v{52+rr}, v{b+2}, v{b+3}")
        a(f"v_add_f32 v{48+rr}, v{48+rr}, v{b+4}")
        a(f"v_add_f32 v{52+rr}, v{52+rr}, v{b+5}")
        a(f"v_add_f32 v{48+rr}, v{48+rr}, v{b+6}")
        a(f"v_add_f32 v{52+rr}, v{52+rr}, v{b+7}")
        a(f"v_add_f32 v{48+rr}, v{48+rr}, v{52+rr}")
    def wave_reduce(base):
        a("s_nop 1")
        for rr in range(R): a(f"v_add_f32_dpp v{56+rr}, v{base+rr}, v{base+rr} quad_perm:[1,0,3,2] row_mask:0xf bank_mask:0xf")
        for rr in range(R): a(f"v_add_f32_dpp v{base+rr}, v{56+rr}, v{56+rr} quad_perm:[2,3,0,1] row_mask:0xf bank_mask:0xf")
        for rr in range(R): a(f"v_add_f32_dpp v{56+rr}, v{base+rr}, v{base+rr} row_half_mirror row_mask:0xf bank_mask:0xf")
        for rr in range(R): a(f"v_add_f32_dpp v{base+rr}, v{56+rr}, v{56+rr} row_mirror row_mask:0xf bank_mask:0xf")
        for rr in range(R): a(f"v_mov_b32 v{56+rr}, v{base+rr}")
        a("s_nop 0")
        for rr in range(R): a(f"v_permlane16_swap_b32 v{56+rr}, v{base+rr}")
        for rr in range(R): a(f"v_add_f32 v{base+rr}, v{base+rr}, v{56+rr}")
        for rr in range(R): a(f"v_mov_b32 v{56+rr}, v{base+rr}")
        a("s_nop 0")
        for rr in range(R): a(f"v_permlane32_swap_b32 v{56+rr}, v{base+rr}")
        for rr in range(R): a(f"v_add_f32 v{base+rr}, v{base+rr}, v{56+rr}")
    wave_reduce(48)
    for rr in range(R):
        a(f"v_mul_f32 v{48+rr}, 0x3b000000, v{48+rr}")
    for rr in range(R):
        for e in range(8):
            a(f"v_sub_f32 v{64+8*rr+e}, v{64+8*rr+e}, v{48+rr}")
    for rr in range(R):
        a(f"v_mul_f32 v{52+rr}, v{64+8*rr}, v{64+8*rr}")
    for e in range(1, 8):
        for rr in range(R):
            a(f"v_fmac_f32 v{52+rr}, v{64+8*rr+e}, v{64+8*rr+e}")
    wave_reduce(52)
    a("v_mov_b32 v72, v48")
    a("v_mov_b32 v73, v52")
    for rr in range(1, R):
        a(f"v_cmp_eq_u32 vcc, {rr}, v1")
        a("s_nop 1")
        a(f"v_cndmask_b32 v72, v72, v{48+rr}, vcc")
        a(f"v_cndmask_b32 v73, v73, v{52+rr}, vcc")
    a(f"""
    v_lshl_add_u32 v74, v4, 2, v1     ; 4w + lane
    v_lshlrev_b32 v74, 2, v74
    s_lshl_b32 s41, s3, 6             ; b*16*4
    s_add_u32 s41, s41, {WS_ST1}
    v_mov_b32 v75, 0
    v_cmp_gt_u32 vcc, {R}, v1
    s_and_saveexec_b64 s[62:63], vcc
    buffer_store_dword v72, v74, s[32:35], s41 offen
    s_add_u32 s42, s41, 8192
    buffer_store_dword v75, v74, s[32:35], s42 offen
    s_add_u32 s42, s41, 16384
    buffer_store_dword v73, v74, s[32:35], s42 offen
    s_mov_b64 exec, s[62:63]
    s_waitcnt lgkmcnt(0)
    s_barrier
    """)
    a("""
    v_lshrrev_b32 v6, 4, v1
    v_lshrrev_b32 v7, 2, v1
    v_and_b32 v7, 3, v7
    v_and_b32 v28, 3, v1
    v_mul_u32_u24 v7, 1088, v7
    v_lshl_add_u32 v7, v6, 5, v7
    v_lshl_add_u32 v7, v28, 3, v7
    v_lshl_add_u32 v7, v4, 8, v7      ; + w*256 bytes
    """)
    for st in range(2):
        for g in range(4):
            a(f"ds_read_b64_tr_b16 v[{8+8*st+2*g}:{9+8*st+2*g}], v7 offset:{128*st + 4352*g}")
    a(f"""
    v_lshl_add_u32 v6, v4, 7, v1
    v_lshlrev_b32 v6, 12, v6
    s_lshl_b32 s41, s3, 5
    s_add_u32 s41, s41, {WS_XT0}
    s_add_u32 s42, s41, {64*4096}
    s_waitcnt lgkmcnt(0)
    """)
    for st in range(2):
        for k in range(2):
            a(f"buffer_store_dwordx4 v[{8+8*st+4*k}:{11+8*st+4*k}], v6, s[32:35], s{41+st} offen offset:{16*k}" + PST)
    trace_rt(a, 1, 0)
    a(f"s_branch {name}_end")
    a.label(f"{name}_pf")
    srd(a, 36, 22, D*DFF*2)
    a(f"""
    s_sub_u32 s3, s2, {NKG+NLN+NCS}
    s_lshl_b32 s40, s3, 16
    v_lshlrev_b32 v5, 4, v0
    """)
    for rr in range(16):
        a(f"buffer_load_dwordx4 v[{8+4*rr}:{11+4*rr}], v5, s[36:39], s40 offen")
        a("s_add_u32 s40, s40, 4096")
    a("s_waitcnt vmcnt(0)")
    a(f"s_branch {name}_end")
    if NCP:
        a.label(f"{name}_cpf")
        a("s_getpc_b64 s[40:41]")
        a.label(f"{name}_pc")
        a(f"""
        s_add_u32 s40, s40, conv1_kernel-{name}_pc
        s_addc_u32 s41, s41, 0
        v_lshlrev_b32 v5, 4, v0
        """)
        for rr in range(12):
            a(f"global_load_dwordx4 v[{8+4*rr}:{11+4*rr}], v5, s[40:41]")
            a("s_add_u32 s40, s40, 4096")
            a("s_addc_u32 s41, s41, 0")
        a("s_waitcnt vmcnt(0)")
        a(f"s_branch {name}_end")
    a.label(f"{name}_colsum")
    a("s_setprio 3")
    srd(a, 36, 20, D*DFF*2)
    a(f"""
    s_sub_u32 s3, s2, {NKG+NLN}
    v_and_b32 v1, 7, v0           ; cg
    v_lshrrev_b32 v2, 3, v0       ; rg
    v_mul_u32_u24 v5, 57344, v2   ; rg*16*3584
    v_lshl_add_u32 v5, v1, 4, v5
    s_lshl_b32 s40, s3, 7
    """)
    for rr in range(16):
        a(f"buffer_load_dwordx4 v[{8+4*rr}:{11+4*rr}], v5, s[36:39], s40 offen")
        a("s_add_u32 s40, s40, 3584")
    for e in range(8):
        a(f"v_mov_b32 v{80+e}, 0")
    for rr in range(16):
        a(f"s_waitcnt vmcnt({15-rr})")
        for e in range(8):
            unpack(a, 72, 8+4*rr, e)
            a(f"v_add_f32 v{80+e}, v{80+e}, v72")
    a("""
    v_lshlrev_b32 v6, 5, v0
    ds_write_b128 v6, v[80:83]
    ds_write_b128 v6, v[84:87] offset:16
    s_waitcnt lgkmcnt(0)
    s_barrier
    v_cmp_gt_u32 vcc, 64, v0
    s_and_saveexec_b64 s[62:63], vcc
    """)
    a(f"s_cbranch_execz {name}_end")
    a("v_lshlrev_b32 v6, 2, v0")
    for k in range(32):
        a(f"ds_read_b32 v{8+k}, v6 offset:{256*k}")
    a("s_waitcnt lgkmcnt(0)")
    for k in range(1, 32):
        a(f"v_add_f32 v8, v8, v{8+k}")
    a(f"""
    s_lshl_b32 s41, s3, 8
    s_add_u32 s41, s41, {WS_CS}
    buffer_store_dword v8, v6, s[32:35], s41 offen
    """)
    trace_rt(a, 1, 0)
    a.label(f"{name}_end")
    a("s_endpgm")
    return 128
```
